```python
import torch

def _softmax(x, axis=-1):
    return torch.softmax(x, dim=axis)
def _gelu(x):
    return torch.nn.functional.gelu(x, approximate="tanh")
def _silu(x):
    return torch.nn.functional.silu(x)
def _sigmoid(x):
    return torch.sigmoid(x)
def _layernorm(x, axis=-1, eps=1e-5):
    m = x.mean(dim=axis, keepdim=True)
    v = x.var(dim=axis, keepdim=True, unbiased=False)
    return (x - m) / torch.sqrt(v + eps)
def _scatter_add(tgt, idx, src, axis=0):
    return tgt.clone().index_add_(axis, idx, src)
def _segment_sum(src, seg, n):
    out = torch.zeros((n,) + src.shape[1:], dtype=src.dtype)
    return out.index_add_(0, seg, src)
def _pad(x, pw):
    flat = tuple(v for pair in reversed(pw) for v in pair)
    return torch.nn.functional.pad(x, flat)

kernel_name = 'parallel_sum__linear_kernel_hedgehog__mixer_s_mlp__prompt'

def setup_inputs():

    _w = (lambda a: (lambda t: t.to(torch.bfloat16) if t.is_floating_point() else t)(torch.as_tensor(a)))
    def _A_setup():
        B, S, D, H = 1, 2048, 640, 32
        Dh = D // H
        return {
            "x": _w((lambda *s: torch.randn(*s, dtype=torch.bfloat16) * 0.05)(B, S, D)),
            "wqkv": _w((lambda *s: torch.randn(*s, dtype=torch.bfloat16) * 0.8)(D, 3 * D)),
            "w_phi": _w((lambda *s: torch.randn(*s, dtype=torch.bfloat16) * 0.8)(H, Dh, Dh) * (Dh ** -0.5)),
            "wo": _w((lambda *s: torch.randn(*s, dtype=torch.bfloat16) * 0.1)(D, D)),
        }
    _A_in = _A_setup()

    def _B_setup():
        B, S, D, F = 1, 2048, 640, 1728
        return {
            "x":  _w((lambda *s: torch.randn(*s, dtype=torch.bfloat16) * 0.05)(B, S, D)),
            "w1": _w((lambda *s: torch.randn(*s, dtype=torch.bfloat16) * 3.2)(D, D) * (D ** -0.5)),
            "w2": _w((lambda *s: torch.randn(*s, dtype=torch.bfloat16) * 3.2)(D, D) * (D ** -0.5)),
            "w3": _w((lambda *s: torch.randn(*s, dtype=torch.bfloat16) * 3.2)(D, F) * (D ** -0.5)),
            "w4": _w((lambda *s: torch.randn(*s, dtype=torch.bfloat16) * 3.2)(F, D) * (F ** -0.5)),
        }
    _B_in = _B_setup()

    return {
        "A_x": _A_in["x"],
        "A_wqkv": _A_in["wqkv"],
        "A_w_phi": _A_in["w_phi"],
        "A_wo": _A_in["wo"],
        "B_x": _B_in["x"],
        "B_w1": _B_in["w1"],
        "B_w2": _B_in["w2"],
        "B_w3": _B_in["w3"],
        "B_w4": _B_in["w4"],
    }

def reference(A_x, A_wqkv, A_w_phi, A_wo, B_x, B_w1, B_w2, B_w3, B_w4):
    def _A_ref(x, wqkv, w_phi, wo):
        B, S, D = x.shape
        H = 32; Dh = D // H
        qkv = (lambda x, *d: x.permute(*d))((x @ wqkv).reshape(B, S, 3, H, Dh), 2, 0, 3, 1, 4)
        q, k, v = qkv[0], qkv[1], qkv[2]
        pq = torch.einsum("bhsd,hdf->bhsf", q, w_phi)
        pk = torch.einsum("bhsd,hdf->bhsf", k, w_phi)
        phi_q = torch.concatenate([_softmax(pq, axis=-1), _softmax(-pq, axis=-1)], axis=-1)
        phi_k = torch.concatenate([_softmax(pk, axis=-1), _softmax(-pk, axis=-1)], axis=-1)
        kv = torch.einsum("bhsf,bhsd->bhfd", phi_k, v)
        z  = torch.einsum("bhsf->bhf", phi_k)
        num = torch.einsum("bhqf,bhfd->bhqd", phi_q, kv)
        den = torch.einsum("bhqf,bhf->bhq", phi_q, z)[..., None] + 1e-6
        o = num / den
        return (lambda x, *d: x.permute(*d))(o, 0, 2, 1, 3).reshape(B, S, D) @ wo

    def _B_ref(x, w1, w2, w3, w4):
        B, S, D = x.shape
        h = _gelu(_layernorm(x, axis=-1) @ w1)
        c = D // 4
        g0 = _pad(h[:, :, 0*c:1*c], ((0, 0), (1, 0), (0, 0)))[:, :S, :]
        g1 = _pad(h[:, :, 1*c:2*c], ((0, 0), (0, 1), (0, 0)))[:, 1:, :]
        g2 = _pad(h[:, :, 2*c:3*c], ((0, 0), (2, 0), (0, 0)))[:, :S, :]
        g3 = _pad(h[:, :, 3*c:   ], ((0, 0), (0, 2), (0, 0)))[:, 2:, :]
        hs = torch.concatenate([g0, g1, g2, g3], axis=-1) @ w2
        x1 = x + hs
        h2 = _gelu(_layernorm(x1, axis=-1) @ w3) @ w4
        return x1 + h2

    x = A_x
    xn = _layernorm(x, axis=-1)
    return x + _A_ref(xn, A_wqkv, A_w_phi, A_wo) + _B_ref(xn, B_w1, B_w2, B_w3, B_w4)
```

```python
import re

class Reg:
    __slots__ = ("kind", "idx", "n")
    def __init__(self, kind, idx, n=1):
        self.kind, self.idx, self.n = kind, idx, n
    def __getitem__(self, i):
        if isinstance(i, slice):
            a = i.start or 0; b = i.stop if i.stop is not None else self.n
            assert 0 <= a < b <= self.n, (a, b, self.n)
            return Reg(self.kind, self.idx + a, b - a)
        assert 0 <= i < self.n, (i, self.n)
        return Reg(self.kind, self.idx + i, 1)
    def sub(self, a, n): return self[a:a + n]
    def regs(self): return [(self.kind, self.idx + i) for i in range(self.n)]
    def __str__(self):
        if self.n == 1: return f"{self.kind}{self.idx}"
        return f"{self.kind}[{self.idx}:{self.idx + self.n - 1}]"
    __repr__ = __str__

def V(i, n=1): return Reg("v", i, n)
def A(i, n=1): return Reg("a", i, n)
def S(i, n=1): return Reg("s", i, n)
class Special:
    def __init__(self, name): self.name = name
    def __str__(self): return self.name
    def regs(self): return [("x", self.name)]
VCC = Special("vcc"); EXEC = Special("exec"); M0 = Special("m0"); SCC = Special("scc")

class Neg:
    def __init__(self, r): self.r = r
    def __str__(self): return f"-{self.r}"
    def regs(self): return self.r.regs()

def regs_of(x):
    if isinstance(x, (Reg, Special, Neg)): return x.regs()
    return []

TRANS = ("v_exp_f32", "v_log_f32", "v_rcp_f32", "v_rsq_f32", "v_sqrt_f32", "v_sin_f32", "v_cos_f32", "v_rcp_iflag_f32")

class Ins:
    __slots__ = ("op", "ops", "mods", "defs", "uses", "cls", "opt", "size", "tag", "comment", "srcc", "nopn", "lds")
    def text(self):
        s = self.op
        if self.ops: s += " " + ", ".join(str(o) for o in self.ops)
        if self.mods: s += " " + self.mods
        return s

def fmt_imm(x):
    if isinstance(x, float):
        inl = {0.0: "0", 0.5: "0.5", -0.5: "-0.5", 1.0: "1.0", -1.0: "-1.0", 2.0: "2.0", -2.0: "-2.0", 4.0: "4.0", -4.0: "-4.0"}
        if x in inl: return inl[x]
        import struct
        return "0x%08x" % struct.unpack("<I", struct.pack("<f", x))[0]
    if isinstance(x, int):
        if -16 <= x <= 64: return str(x)
        return "0x%x" % (x & 0xffffffff)
    return x

class Asm:
    def __init__(self):
        self.items = []
        self.opt = 0
        self.nregion = 0
        self.side = []
        self.side_every = 0
        self.side_cnt = 0
        self.in_side = False
        self.pend_vm = []
        self.pend_lgkm = []
        self.nvm = 0
        self.max_vm = 0
    def raw(self, s): self.items.append(s)
    def label(self, s): self.items.append(s + ":")
    def comment(self, s): self.items.append("; " + s)

    def _mk(self, op, ops, mods=""):
        ins = Ins(); ins.op = op; ins.mods = mods; ins.opt = self.opt; ins.tag = None; ins.srcc = None; ins.nopn = 0; ins.lds = False
        mo = re.search(r"offset:(\d+)", mods or "")
        if mo:
            lim = 4095 if op.startswith(("buffer_", "global_")) else 65535
            assert int(mo.group(1)) <= lim, (op, mods)
        ops = [fmt_imm(o) if isinstance(o, (int, float)) and not isinstance(o, bool) else o for o in ops]
        ins.ops = ops
        d, u = [], []
        base = op.replace("_e32", "").replace("_e64", "")
        if base.startswith("v_mfma"):
            ins.cls = "mfma"; d = regs_of(ops[0]); u = regs_of(ops[1]) + regs_of(ops[2]) + regs_of(ops[3]); ins.srcc = regs_of(ops[3])
        elif base.startswith("v_cmp"):
            ins.cls = "valu"; d = regs_of(ops[0]); u = sum((regs_of(o) for o in ops[1:]), [])
        elif base in ("v_readfirstlane_b32", "v_readlane_b32"):
            ins.cls = "valu"; d = regs_of(ops[0]); u = sum((regs_of(o) for o in ops[1:]), [])
        elif base in ("v_permlane16_swap_b32", "v_permlane32_swap_b32"):
            ins.cls = "valu"; d = regs_of(ops[0]) + regs_of(ops[1]); u = list(d)
        elif base.startswith("v_"):
            ins.cls = "trans" if base in TRANS else "valu"
            d = regs_of(ops[0]); u = sum((regs_of(o) for o in ops[1:]), [])
            if base in ("v_fmac_f32", "v_dot2c_f32_bf16", "v_pk_fmac_f16"): u += regs_of(ops[0])
            if base == "v_cndmask_b32" and len(ops) == 3: u += VCC.regs()
            if base in ("v_add_co_u32", "v_sub_co_u32"):
                d = regs_of(ops[0]) + regs_of(ops[1]); u = sum((regs_of(o) for o in ops[2:]), [])
            if base == "v_addc_co_u32":
                d = regs_of(ops[0]) + regs_of(ops[1]); u = sum((regs_of(o) for o in ops[2:]), [])
        elif base.startswith("ds_"):
            ins.cls = "ds"
            if base.startswith("ds_read") or base.startswith("ds_bpermute") or base.startswith("ds_permute") or base.startswith("ds_swizzle"):
                d = regs_of(ops[0]); u = sum((regs_of(o) for o in ops[1:]), [])
            else:
                u = sum((regs_of(o) for o in ops), [])
        elif base.startswith("buffer_") or base.startswith("global_"):
            ins.cls = "vmem"
            isld = "_load" in base
            if "lds" in mods.split():
                ins.lds = True; u = sum((regs_of(o) for o in ops), []) + M0.regs()
            elif isld:
                d = regs_of(ops[0]); u = sum((regs_of(o) for o in ops[1:]), [])
                if "d16" in base: u += regs_of(ops[0])
            else:
                u = sum((regs_of(o) for o in ops), [])
        elif base.startswith("s_load") or base in ("s_memtime", "s_memrealtime"):
            ins.cls = "smem"; d = regs_of(ops[0]); u = sum((regs_of(o) for o in ops[1:]), [])
        elif base in ("s_waitcnt", "s_barrier", "s_nop", "s_sleep", "s_setprio", "s_endpgm", "s_branch") or base.startswith("s_cbranch"):
            ins.cls = "sopp"
            if base == "s_cbranch_vccnz" or base == "s_cbranch_vccz": u = VCC.regs()
            if base.startswith("s_cbranch_scc"): u = SCC.regs()
            if base.startswith("s_cbranch_exec"): u = EXEC.regs()
        elif base.startswith("s_cmp"):
            ins.cls = "salu"; d = SCC.regs(); u = sum((regs_of(o) for o in ops), [])
        elif base.startswith("s_"):
            ins.cls = "salu"; d = regs_of(ops[0]); u = sum((regs_of(o) for o in ops[1:]), [])
            if base not in ("s_mov_b32", "s_mov_b64", "s_movk_i32", "s_getpc_b64", "s_mul_i32", "s_mul_hi_u32", "s_cselect_b32", "s_cselect_b64"): d = d + SCC.regs()
            if base.startswith("s_cselect") or base in ("s_addc_u32", "s_subb_u32"): u = u + SCC.regs()
            if "saveexec" in base: d = d + EXEC.regs(); u = u + EXEC.regs()
        else:
            raise ValueError("unknown op " + op)
        ins.defs = d; ins.uses = u
        return ins

    def _need(self, pend, regs):
        rs = set(regs); last = -1
        for i, p in enumerate(pend):
            if p["regs"] & rs: last = i
        if last < 0: return None
        return sum(1 for p in pend[last + 1:] if (not p["opt"]) or (self.opt and p["opt"] == self.opt))
    def _emit_wait(self, vm=None, lgkm=None):
        parts = []
        if vm is not None:
            vm = min(vm, 63); parts.append(f"vmcnt({vm})")
            self._retire(self.pend_vm, vm)
        if lgkm is not None:
            lgkm = min(lgkm, 15); parts.append(f"lgkmcnt({lgkm})")
            self._retire(self.pend_lgkm, lgkm)
        ins = self._mk("s_waitcnt", [" ".join(parts)]); self.items.append(ins)
    def _present(self, p):
        return (not p["opt"]) or (self.opt and p["opt"] == self.opt)
    def _retire(self, pend, n):
        keep = []; cnt = 0
        for p in reversed(pend):
            if cnt >= n: break
            keep.append(p)
            if self._present(p): cnt += 1
        kid = set(id(p) for p in keep)
        if self.opt:
            pend[:] = [p for p in pend if id(p) in kid or p["opt"] != self.opt]
        else:
            pend[:] = [p for p in pend if id(p) in kid]
    def drop_tag(self, tag):
        self.pend_vm[:] = [p for p in self.pend_vm if p["tag"] != tag]
    def wait_vm_tag(self, tag):
        last = -1
        for i, p in enumerate(self.pend_vm):
            if p["tag"] == tag: last = i
        if last < 0: return
        n = sum(1 for p in self.pend_vm[last + 1:] if (not p["opt"]) or (self.opt and p["opt"] == self.opt))
        self._emit_wait(vm=n)
    def wait_lgkm_tag(self, tag):
        last = -1
        for i, p in enumerate(self.pend_lgkm):
            if p["tag"] == tag: last = i
        if last < 0: return
        n = sum(1 for p in self.pend_lgkm[last + 1:] if not p["opt"])
        if any(p["smem"] for p in self.pend_lgkm): n = 0
        self._emit_wait(lgkm=n)
    def wait_all(self, vm=True, lgkm=True):
        self._emit_wait(vm=0 if vm else None, lgkm=0 if lgkm else None)
    def forget_pending(self):
        self.pend_vm = []; self.pend_lgkm = []

    def I(self, op, *ops, mods="", tag=None):
        ins = self._mk(op, list(ops), mods); ins.tag = tag
        touched = ins.defs + ins.uses
        nv = self._need(self.pend_vm, touched)
        nl = self._need(self.pend_lgkm, touched)
        if nl is not None and any(p["smem"] for p in self.pend_lgkm): nl = 0
        if nv is not None or nl is not None: self._emit_wait(nv, nl)
        if ins.cls == "vmem":
            n_out = len(self.pend_vm)
            if n_out >= 58: self._emit_wait(vm=max(0, min(54, sum(1 for p in self.pend_vm if not p["opt"]) - 1)))
            self.pend_vm.append(dict(regs=set(ins.defs), tag=tag, opt=ins.opt, smem=False))
            self.max_vm = max(self.max_vm, len(self.pend_vm))
        elif ins.cls == "ds":
            self.pend_lgkm.append(dict(regs=set(ins.defs), tag=tag, opt=ins.opt, smem=False))
        elif ins.cls == "smem":
            self.pend_lgkm.append(dict(regs=set(ins.defs), tag=tag, opt=ins.opt, smem=True))
        self.items.append(ins)
        if self.side and self.side_every and not self.in_side and not self.opt and ins.cls in ("valu", "trans", "mfma"):
            self.side_cnt += 1
            if self.side_cnt >= self.side_every:
                self.side_cnt = 0
                self.run_side(1)
        return ins

    def run_side(self, n=1):
        self.in_side = True
        for _ in range(n):
            if not self.side: break
            self.side.pop(0)()
        self.in_side = False
    def flush_side(self):
        self.run_side(len(self.side))
    def begin_opt(self):
        self.nregion += 1; self.opt = self.nregion
    def end_opt(self):
        self.opt = 0

    def _required(self, p, c):
        need = 0
        pd = set(p.defs); cu = set(c.uses); cd = set(c.defs)
        pv = p.cls in ("valu", "trans")
        cv = c.cls in ("valu", "trans")
        vg = lambda s: {r for r in s if r[0] in ("v", "a")}
        sg = lambda s: {r for r in s if r[0] == "s" or r == ("x", "vcc")}
        if pv and c.cls == "mfma" and vg(pd) & cu: need = max(need, 2)
        if p.cls == "mfma":
            D = vg(pd)
            if c.cls == "mfma":
                cc = set(c.srcc); ab = set(regs_of(c.ops[1]) + regs_of(c.ops[2]))
                if D & ab: need = max(need, 8)
                if D & cc and not (D == cc): need = max(need, 6)
                if D & cd and not (D == cd and D == cc) and not (D & cc): need = max(need, 8)
            elif cv or c.cls in ("ds", "vmem"):
                if D & (cu | cd): need = max(need, 8)
            if cv and set(p.srcc) & cd: need = max(need, 3)
        if p.cls == "trans" and cv and vg(pd) & cu: need = max(need, 1)
        if pv and c.op.startswith("v_permlane") and vg(pd) & cu: need = max(need, 2)
        if pv and cv and "dpp" in (c.mods or "") and vg(pd) & cu: need = max(need, 2)
        if pv and cv and sg(pd) & cu: need = max(need, 2)
        if pv and c.op.startswith(("v_readlane", "v_writelane")) and sg(pd) & cu: need = max(need, 4)
        if pv and c.cls == "vmem" and sg(pd) & cu: need = max(need, 5)
        if pv and c.cls in ("salu", "smem") and sg(pd) & cu: need = max(need, 4)
        if pv and c.cls == "sopp" and sg(pd) & cu: need = max(need, 4)
        if pv and c.op.startswith(("v_readfirstlane", "v_readlane")) and vg(pd) & cu: need = max(need, 1)
        if p.cls == "salu" and ("x", "m0") in pd and c.cls == "vmem" and c.lds: need = max(need, 1)
        if p.cls == "salu" and ("x", "exec") in pd and c.cls == "mfma": need = max(need, 4)
        if p.cls == "vmem" and not p.lds and ("store" in p.op or "atomic" in p.op) and ("x4" in p.op or "x3" in p.op):
            data = set(regs_of(p.ops[0])) if p.op.startswith("buffer") else set(regs_of(p.ops[1]))
            if data & cd: need = max(need, 2 if cv else 1)
        return need

    def finalize(self):
        out = []; hist = []
        WIN = 12
        for it in self.items:
            if isinstance(it, str):
                out.append(it)
                continue
            need = 0
            dist = 0
            for p in reversed(hist):
                r = self._required(p, it)
                if r > dist: need = max(need, r - dist)
                if not p.opt or p.opt == it.opt: dist += (p.nopn + 1 if p.op == "s_nop" else 1)
                if dist >= WIN: break
            while need > 0:
                k = min(need, 16)
                nop = self._mk("s_nop", [k - 1]); nop.nopn = k - 1; nop.opt = it.opt
                out.append(nop); hist.append(nop); need -= k
            if it.op == "s_nop": it.nopn = int(str(it.ops[0]), 0)
            out.append(it); hist.append(it)
            if len(hist) > 40: hist = hist[-40:]
        self.final = out
        return out

    def text(self):
        lines = []
        for it in self.finalize():
            lines.append(it if isinstance(it, str) else "  " + it.text())
        return "\n".join(lines) + "\n"

    def count(self):
        return sum(1 for it in self.final if not isinstance(it, str))

class RegAlloc:
    def __init__(self, kind, lo, hi):
        self.kind = kind; self.free = [True] * hi; self.lo = lo; self.hi = hi; self.peak = lo
        for i in range(lo): self.free[i] = False
    def alloc(self, n=1, align=None):
        if align is None: align = 2 if n >= 2 else 1
        i = (self.lo + align - 1) // align * align
        while i + n <= self.hi:
            if all(self.free[i:i + n]):
                for j in range(i, i + n): self.free[j] = False
                self.peak = max(self.peak, i + n)
                return Reg(self.kind, i, n)
            i += align
        raise RuntimeError(f"out of {self.kind} registers (need {n})")
    def release(self, *rs):
        for r in rs:
            for j in range(r.idx, r.idx + r.n):
                assert not self.free[j], f"double free {self.kind}{j}"
                self.free[j] = True
```

```python
import sys, math
from asmlib import *

NAME = "parallel_sum__linear_kernel_hedgehog__mixer_s_mlp__prompt_kernel"

WS_E     = 0
WS_FLAGS = 4096
ST_H1, ST_KV, ST_X1, ST_H3, ST_O = 0, 1, 2, 3, 4
WS_KVP   = 0x4000
WS_ST1   = 0x184000
WS_H     = 0x1A4000
WS_X1    = 0x42E000
WS_O     = 0x6AE000
WS_H3    = 0x92E000
WS_END   = 0xFEE000
WS_DBG   = 0x1000000
WS_SIZE_DBG = WS_DBG + 256 * 0x40000
OOB      = 0x40000000

LDS_SIZE = 163840
STR      = 53328
L_STATS  = 162816
L_CS1    = 161728
L_CS2    = L_CS1 + 320
L_CS3    = L_CS2 + 320
L_STG    = 106624
STGP     = 272
L_RED    = 141248
L_KVT    = 143360
L_ZERO   = L_KVT + 6144

EPS = 1e-5
LOG2E = 1.4426950408889634
GC0 = -2.0 * 0.7978845608028654 * LOG2E
GC1 = GC0 * 0.044715
EPOCH_G = 0x9E3779B8
POLL_BUDGET = 1 << 18

class K:
    def __init__(self, stop="end", debug=False, prof=False):
        self.a = Asm(); self.stop = stop; self.debug = debug; self.prof = prof
        self.va = RegAlloc("v", 1, 256); self.aa = RegAlloc("a", 0, 256); self.sa = RegAlloc("s", 52, 100)
        self.nlabel = 0
        self.dslot = 0
        self.dumps = []
        self.stamps = []
        self.dbgB = '--dbgB' in sys.argv
        self.dbgA = not self.dbgB
    def lab(self, p="L"):
        self.nlabel += 1; return f"{p}_{self.nlabel}"
    def v(self, n=1, align=None): return self.va.alloc(n, align)
    def s(self, n=1, align=None): return self.sa.alloc(n, align)
    def vfree(self, *r): self.va.release(*r)
    def sfree(self, *r): self.sa.release(*r)
    def I(self, *x, **k): return self.a.I(*x, **k)

    sR, sC, sW, sE = S(4), S(5), S(6), S(7)
    SX, SQKV, SW1, SWS, SW2, SW3, SW4, SWO, SOUT, SPHI, SDBG = [S(8 + 4 * i, 4) for i in range(11)]

    def dump(self, reg, name=None):
        if not self.debug: return
        I = self.I
        self.a.in_side = True
        first = self.dslot
        t = self.v(); st = self.s()
        I("s_lshl_b32", st, S(2), 18)
        I("s_add_u32", st, st, WS_DBG)
        I("v_lshlrev_b32", t, 2, V(0))
        for i in range(reg.n):
            r = reg[i]
            if r.kind == "a":
                t2 = self.v(); I("v_accvgpr_read_b32", t2, r); r2 = t2
            else: r2 = r; t2 = None
            so = self.s()
            I("s_add_u32", so, st, self.dslot * 1024)
            I("buffer_store_dword", r2, t, self.SWS, so, mods="offen")
            self.sfree(so)
            if t2 is not None:
                self.a.wait_all(lgkm=False); self.vfree(t2)
            self.dslot += 1
        assert self.dslot <= 256
        I("s_nop", 1)
        self.vfree(t); self.sfree(st)
        self.dumps.append((name, first, reg.n))
        self.a.in_side = False

    def dump_lds(self, base, nslots, name):
        if not self.debug: return
        I = self.I; self.a.in_side = True
        t, d = self.v(), self.v()
        I("v_lshlrev_b32", t, 2, V(0)); I("v_add_u32", t, base, t)
        first = self.dslot
        for j in range(nslots):
            I("ds_read_b32", d, t, mods=f"offset:{j * 1024}")
            self.dumps_saved = list(self.dumps)
            self.dump(d, None); self.dumps = self.dumps_saved
            self.a.in_side = True
            self.a.wait_all()
        self.dumps.append((name, first, nslots))
        self.vfree(t, d); self.a.in_side = False

    def stamp(self, name):
        if not self.prof: return
        t = self.s(2, 2); d = self.sa_prof.alloc(1)
        self.a.in_side = True
        self.a.wait_all(vm=False)
        self.I("s_memtime", t); self.a.wait_all(vm=False)
        self.I("s_mov_b32", d, t[0]); self.sfree(t)
        self.a.in_side = False
        self.stamps.append((name, d))
    def write_stamps(self):
        if not self.prof: return
        I = self.I
        t, t2 = self.v(), self.v(); st = self.s()
        I("s_lshl_b32", st, S(2), 2); I("s_add_u32", st, st, self.sW); I("s_lshl_b32", st, st, 7)
        I("s_add_u32", st, st, WS_END)
        I("v_mov_b32", t, 0)
        for i, (n, d) in enumerate(self.stamps):
            I("v_mov_b32", t2, d)
            I("buffer_store_dword", t2, t, self.SWS, st, mods=f"offen offset:{4 * i}")
            self.a.wait_all(lgkm=False)
        self.vfree(t, t2); self.sfree(st)

    def setup(self):
        I = self.I; a = self.a
        I("s_cmp_ge_u32", S(2), 256)
        I("s_cbranch_scc1", "L_exit")
        I("s_load_dwordx8", S(60, 8), S(0, 2), 0)
        I("s_load_dwordx8", S(68, 8), S(0, 2), 40)
        I("s_load_dwordx4", S(76, 4), S(0, 2), 72)
        I("s_load_dwordx2", S(80, 2), S(0, 2), 88)
        I("s_and_b32", S(3), S(2), 7)
        I("s_lshr_b32", S(82), S(2), 3)
        I("s_lshr_b32", self.sR, S(3), 1)
        I("s_lshl_b32", self.sR, self.sR, 2)
        I("s_lshr_b32", S(83), S(82), 3)
        I("s_add_u32", self.sR, self.sR, S(83))
        I("s_and_b32", self.sC, S(3), 1)
        I("s_lshl_b32", self.sC, self.sC, 3)
        I("s_and_b32", S(83), S(82), 7)
        I("s_add_u32", self.sC, self.sC, S(83))
        self.vL, self.vN, self.vG = self.v(), self.v(), self.v()
        t = self.v()
        I("v_lshrrev_b32", t, 6, V(0))
        I("v_and_b32", self.vL, 63, V(0))
        I("v_readfirstlane_b32", self.sW, t)
        I("v_and_b32", self.vN, 15, self.vL)
        I("v_lshrrev_b32", self.vG, 4, self.vL)
        self.vfree(t)
        a.wait_all(vm=False)
        def srd(d, p, size):
            I("s_mov_b32", d[0], S(p)); I("s_mov_b32", d[1], S(p + 1))
            I("s_mov_b32", d[2], size); I("s_mov_b32", d[3], 0x00020000)
        extra = 0x40000 if self.prof else 0
        srd(self.SX, 60, 2048 * 640 * 2)
        srd(self.SQKV, 62, 640 * 1920 * 2)
        srd(self.SW1, 68, 640 * 640 * 2)
        srd(self.SWS, 80, WS_SIZE_DBG if self.debug else WS_END + extra)
        srd(self.SPHI, 64, 32 * 400 * 2)
        srd(self.SWO, 66, 640 * 640 * 2)
        srd(self.SW2, 70, 640 * 640 * 2)
        srd(self.SW3, 72, 640 * 1728 * 2)
        srd(self.SW4, 74, 1728 * 640 * 2)
        srd(self.SOUT, 76, 2048 * 640 * 2)
        srd(self.SDBG, 78, 256)
        self.sW1024 = self.s()
        I("s_lshl_b32", self.sW1024, self.sW, 10)
        self.s20480 = self.s(); I("s_mov_b32", self.s20480, 20480)
        if self.prof: self.sa_prof = RegAlloc("s", 84, 102)
        if self.prof: self.sa.hi = 84
        self.stamp("start")

    def udiv(self, dst, src, d, maxval):
        for sh in range(8, 24):
            m = -(-(1 << sh) // d)
            if m * maxval < (1 << 32) and m < (1 << 24) and all((x * m) >> sh == x // d for x in range(maxval + 1)):
                self.I("v_mul_u32_u24", dst, m, src); self.I("v_lshrrev_b32", dst, sh, dst); return
        raise RuntimeError("no magic")

    def patterns(self, units, nper, pitches, scheme, wavesel):
        I = self.I
        sw, nw = wavesel
        res = {p: self.v(nper, 1) for p in pitches}
        u, rho, cq, k, t = self.v(), self.v(), self.v(), self.v(), self.v()
        sb = self.s()
        I("s_lshl_b32", sb, sw, 6)
        for p in range(nper):
            I("v_add_u32", u, sb, self.vL)
            if p: I("v_add_u32", u, 64 * nw * p, u)
            self.udiv(rho, u, units, 64 * nw * nper)
            I("v_mul_u32_u24", t, units, rho)
            I("v_sub_u32", cq, u, t)
            I("v_lshlrev_b32", cq, 4, cq)
            if scheme == "parity":
                I("v_and_b32", k, 0xfff8, rho)
                I("v_and_b32", t, 1, rho)
                I("v_lshl_or_b32", k, t, 2, k)
                I("v_bfe_u32", t, rho, 1, 2)
                I("v_or_b32", k, k, t)
            else:
                I("v_and_b32", k, 0xfff3, rho)
                I("v_bfe_u32", t, rho, 2, 1)
                I("v_lshl_or_b32", k, t, 3, k)
                I("v_bfe_u32", t, rho, 3, 1)
                I("v_lshl_or_b32", k, t, 2, k)
            for pitch in pitches:
                I("v_mul_u32_u24", t, pitch, k)
                I("v_add_u32", res[pitch][p], t, cq)
        self.vfree(u, rho, cq, k, t); self.sfree(sb)
        return res

    def dma_pair(self, srd, voff, soff, m0base, m0off, tag):
        return [lambda: self.I("s_add_u32", M0, m0base, m0off),
                lambda: self.I("buffer_load_dwordx4", voff, srd, soff, mods="offen lds", tag=tag)]

    def merge(self, *lists):
        lists = [list(l) for l in lists]
        while any(lists):
            for l in lists:
                if l: l.pop(0)()

    def allred4(self, r, op):
        I = self.I; A_, B_, C_, D_ = r
        T = [lambda: I("v_permlane16_swap_b32", A_, B_), lambda: I("v_permlane16_swap_b32", C_, D_),
             lambda: I(op, A_, A_, B_), lambda: I(op, C_, C_, D_),
             lambda: I("v_permlane32_swap_b32", A_, C_), lambda: I(op, A_, A_, C_),
             lambda: I("v_mov_b32", B_, A_), lambda: I("v_permlane32_swap_b32", A_, B_),
             lambda: I("v_mov_b32", C_, A_), lambda: I("v_mov_b32", D_, B_),
             lambda: I("v_permlane16_swap_b32", A_, C_), lambda: I("v_permlane16_swap_b32", B_, D_)]
        return T, [A_, C_, B_, D_]

    def allred2(self, A_, B_, op):
        I = self.I
        I("v_permlane16_swap_b32", A_, B_); I(op, A_, A_, B_)
        I("v_mov_b32", B_, A_); I("v_permlane32_swap_b32", A_, B_); I(op, A_, A_, B_)
        I("v_mov_b32", B_, A_); I("v_permlane16_swap_b32", A_, B_)
        return A_, B_

    def gelu_pack(self, pairs, dsts, scale=None):
        I = self.I
        n = len(pairs)
        T = [self.v(2, 2) for _ in range(n)]
        for i in range(n):
            if scale is not None: I("v_pk_mul_f32", pairs[i], pairs[i], scale[i], mods="op_sel_hi:[1,0]")
        for i in range(n): I("v_pk_mul_f32", T[i], pairs[i], pairs[i])
        for i in range(n): I("v_pk_fma_f32", T[i], T[i], self.sGC1, self.vGC0, mods="op_sel_hi:[1,0,0]")
        for i in range(n): I("v_pk_mul_f32", T[i], T[i], pairs[i])
        for i in range(n): I("v_exp_f32", T[i][0], T[i][0]); I("v_exp_f32", T[i][1], T[i][1])
        for i in range(n): I("v_pk_add_f32", T[i], T[i], self.vGC0, mods="op_sel:[0,1] op_sel_hi:[1,1]")
        for i in range(n): I("v_rcp_f32", T[i][0], T[i][0]); I("v_rcp_f32", T[i][1], T[i][1])
        for i in range(n): I("v_pk_mul_f32", T[i], T[i], pairs[i])
        for i in range(n): I("v_cvt_pk_bf16_f32", dsts[i], T[i][0], T[i][1])
        self.vfree(*T)

    def consts(self):
        I = self.I
        self.sGC1 = self.s(2, 2); I("s_mov_b32", self.sGC1[0], GC1); I("s_mov_b32", self.sGC1[1], GC1)
        self.vGC0 = self.v(2, 2); I("v_mov_b32", self.vGC0[0], GC0); I("v_mov_b32", self.vGC0[1], 1.0)

    def flag_off(self, dst, stage, row, col):
        I = self.I
        t = self.s()
        I("s_lshl_b32", dst, row, 6); I("s_lshl_b32", t, col, 2); I("s_add_u32", dst, dst, t)
        I("s_add_u32", dst, dst, WS_FLAGS + stage * 1024); self.sfree(t)

    def set_flag(self, stage, row, col):
        I = self.I; a = self.a
        lab = self.lab("L_nf")
        a.in_side = True
        I("s_cmp_lg_u32", self.sW, 0); I("s_cbranch_scc1", lab)
        a.begin_opt()
        so = self.s(); t = self.v()
        self.flag_off(so, stage, row, col)
        I("v_mov_b32", t, self.sE)
        I("s_mov_b64", EXEC, 1)
        I("buffer_store_dword", t, "off", self.SWS, so, mods="sc1")
        I("s_mov_b64", EXEC, -1)
        I("s_nop", 1)
        self.sfree(so); self.vfree(t)
        a.end_opt(); a.label(lab)
        a.in_side = False

    def poll(self, mkaddr):
        I = self.I; a = self.a
        skip, loop, done = self.lab("L_ps"), self.lab("L_pl"), self.lab("L_pd")
        a.in_side = True
        I("s_cmp_lg_u32", self.sW, 0); I("s_cbranch_scc1", skip)
        a.begin_opt()
        va, vf = self.v(), self.v(); so = self.s(); cnt = self.s()
        mkaddr(va, so)
        I("s_mov_b32", cnt, POLL_BUDGET)
        a.label(loop)
        I("buffer_load_dword", vf, va, self.SWS, so, mods="offen sc1")
        a._emit_wait(vm=0)
        I("v_cmp_ne_u32", VCC, self.sE, vf)
        I("s_sub_u32", cnt, cnt, 1)
        I("s_cbranch_vccz", done)
        I("s_cmp_lg_u32", cnt, 0)
        I("s_cbranch_scc1", loop)
        a.label(done)
        self.vfree(va, vf); self.sfree(so, cnt)
        a.end_opt(); a.label(skip)
        a.in_side = False

    def poll_row(self, stage, row):
        def mk(va, so):
            self.I("v_lshlrev_b32", va, 2, self.vN)
            self.I("s_lshl_b32", so, row, 6); self.I("s_add_u32", so, so, WS_FLAGS + stage * 1024)
        self.poll(mk)

    def epoch_load(self):
        I = self.I; a = self.a
        lab = self.lab("L_e0")
        self.vEp = self.v()
        I("v_mov_b32", self.vEp, 0)
        I("s_or_b32", S(3), S(2), self.sW); I("s_cmp_lg_u32", S(3), 0); I("s_cbranch_scc1", lab)
        a.begin_opt()
        I("buffer_load_dword", self.vEp, "off", self.SWS, 0, mods="sc1", tag="eload")
        a.end_opt(); a.label(lab)
    def epoch_publish(self):
        I = self.I; a = self.a
        lab = self.lab("L_e1")
        a.in_side = True
        I("s_or_b32", S(3), S(2), self.sW); I("s_cmp_lg_u32", S(3), 0); I("s_cbranch_scc1", lab)
        a.begin_opt()
        a.wait_vm_tag("eload"); a.drop_tag("eload")
        I("v_add_u32", self.vEp, EPOCH_G, self.vEp)
        I("v_or_b32", self.vEp, 1, self.vEp)
        I("s_mov_b64", EXEC, 1)
        I("buffer_store_dword", self.vEp, "off", self.SWS, 0, mods="sc1")
        I("buffer_store_dword", self.vEp, "off", self.SDBG, 0, mods="sc1")
        I("s_mov_b64", EXEC, -1)
        I("s_nop", 1)
        a.end_opt(); a.label(lab)
        a.in_side = False
    def epoch_fetch_issue(self):
        self.I("buffer_load_dword", self.vEp, "off", self.SDBG, 0, mods="sc1", tag="efetch")
    def epoch_fetch_finish(self):
        I = self.I; a = self.a
        skip, loop, done = self.lab("L_fs"), self.lab("L_fl"), self.lab("L_fd")
        a.in_side = True
        a.wait_vm_tag("efetch")
        I("v_readfirstlane_b32", self.sE, self.vEp)
        I("s_cmp_lg_u32", self.sW, 0); I("s_cbranch_scc1", skip)
        a.begin_opt()
        cnt = self.s()
        I("s_mov_b32", cnt, POLL_BUDGET)
        a.label(loop)
        I("s_cmp_lg_u32", self.sE, 0); I("s_cbranch_scc1", done)
        I("buffer_load_dword", self.vEp, "off", self.SDBG, 0, mods="sc1")
        a._emit_wait(vm=0)
        I("v_readfirstlane_b32", self.sE, self.vEp)
        I("s_sub_u32", cnt, cnt, 1)
        I("s_cmp_lg_u32", cnt, 0); I("s_cbranch_scc1", loop)
        a.label(done)
        self.sfree(cnt)
        a.end_opt(); a.label(skip)
        self.vfree(self.vEp)
        a.in_side = False
    def dma80(self, srd, pats, soffs, region, tagname, i):
        return self.dma_pair(srd, pats[i % 5], soffs[i // 5], self.sW1024, region + i * 4096, (tagname, i))

    def trbases80(self):
        I = self.I
        bA0, bA1, bB = self.v(), self.v(), self.v()
        t, t2, cq = self.v(), self.v(), self.v()
        I("v_bfe_u32", t, self.vL, 2, 2)
        I("v_lshlrev_b32", t, 1, t)
        I("v_lshl_add_u32", t, self.vG, 3, t)
        I("v_mul_u32_u24", t, 80, t)
        I("v_and_b32", cq, 3, self.vL)
        I("v_lshl_add_u32", bA0, cq, 3, t)
        I("v_add_u32", bA1, STR, bA0)
        I("v_add_u32", bB, 64, bA0)
        I("v_add_u32", t2, STR - 16, bA0)
        I("v_cmp_gt_u32", VCC, 2, cq)
        I("v_cndmask_b32", bB, t2, bB, VCC)
        self.vfree(t, t2, cq)
        return bA0, bA1, bB

    def tr_read80(self, dst, T, half, s, bases):
        bA0, bA1, bB = bases
        base, off = {0: (bA0, 0), 1: (bA0, 32), 2: (bB, 0), 3: (bA1, 16), 4: (bA1, 48)}[T]
        self.I("ds_read_b64_tr_b16", dst[2 * half:2 * half + 2], base, mods=f"offset:{off + s * 2560 + half * 80}", tag=("wf", s, T, half))

    def gemm80(self, X, acc, bases, F, ones, csacc, extras, vm_items, tagB, hooks={}, vm_per_step=4):
        I = self.I; a = self.a
        need_round = lambda smax: -(-(160 * (smax + 1)) // 256)
        def barrier_for(t):
            last = min(need_round(min(t + 1, 19)), 13) - 1
            a.wait_vm_tag((tagB, last))
            pre, post = hooks.get(t, (None, None))
            if pre: pre()
            I("s_barrier")
            if post: post()
        barrier_for(0)
        for T in range(5):
            for h in range(2): self.tr_read80(F[0][T], T, h, 0, bases)
        vm = list(vm_items)
        for s in range(20):
            cur = F[s & 1]; nxt = F[(s + 1) & 1]
            side = []
            if s + 1 < 20:
                if (s + 1) % 2 == 0: barrier_for(s + 1)
                for T in range(5):
                    for h in range(2):
                        side.append(lambda T=T, h=h: self.tr_read80(nxt[T], T, h, s + 1, bases))
            ex = extras(s)
            mf = list(ex)
            for T in range(5):
                for tt in range(2):
                    mf.append(lambda T=T, tt=tt: I("v_mfma_f32_16x16x32_bf16", acc[T][tt], cur[T], X[s][tt], acc[T][tt] if s else 0))
            ne = len(ex)
            waits = {ne: ("wf", s, 1, 1), ne + 4: ("wf", s, 3, 1), ne + 8: ("wf", s, 4, 1)} if ne < 4 else {ne: ("wf", s, 2, 1), ne + 6: ("wf", s, 4, 1)}
            nvm = 0
            for j, m in enumerate(mf):
                if j in waits: a.wait_lgkm_tag(waits[j])
                m()
                if side: side.pop(0)()
                elif vm and nvm < vm_per_step: vm.pop(0)(); nvm += 1
            while side: side.pop(0)()
            while vm and nvm < vm_per_step: vm.pop(0)(); nvm += 1
            lab = self.lab("L_cs")
            I("s_cmp_lg_u32", self.sW, s & 3)
            I("s_cbranch_scc1", lab)
            a.begin_opt()
            for T in range(5):
                I("v_mfma_f32_16x16x32_bf16", csacc[T], ones, cur[T], csacc[T])
            a.end_opt()
            a.label(lab)
        while vm: vm.pop(0)()

    def colsum_exchange(self, cs, nT, lbase):
        I = self.I; a = self.a
        t = self.v()
        I("v_lshlrev_b32", t, 2, self.vN)
        I("v_add_u32", t, lbase, t)
        I("s_mov_b64", EXEC, 0xFFFF)
        for T in range(nT): I("ds_add_f32", t, cs[T][0], mods=f"offset:{64 * T}")
        I("s_mov_b64", EXEC, -1)
        a.wait_all(vm=False)
        I("s_barrier")
        I("v_lshlrev_b32", t, 4, self.vG)
        I("v_add_u32", t, lbase, t)
        for T in range(nT): I("ds_read_b128", cs[T], t, mods=f"offset:{64 * T}")
        self.vfree(t)

    def stage_A1(self):
        I = self.I; a = self.a
        sR, sC, sW = self.sR, self.sC, self.sW
        XA = self.aa.alloc(160, 4)
        X = [[XA[(s * 2 + tt) * 4:(s * 2 + tt) * 4 + 4] for tt in range(2)] for s in range(20)]
        self.X = X; self.XA = XA
        vX = self.v(); st = self.s()
        I("s_lshl_b32", st, sR, 2); I("s_add_u32", st, st, sW); I("s_lshl_b32", st, st, 5)
        I("v_add_u32", vX, st, self.vN)
        I("v_mul_u32_u24", vX, 1280, vX)
        I("v_lshl_add_u32", vX, self.vG, 4, vX)
        self.sfree(st)
        xload = lambda s, tt: I("buffer_load_dwordx4", X[s][tt], vX, self.SX, self.s20480 if tt else 0, mods=f"offen offset:{s * 64}")
        for s in range(2):
            for tt in range(2): xload(s, tt)
        pats = self.patterns(5, 5, [3840, 1280], "parity", (sW, 4))
        self.p3840, p1280 = pats[3840], pats[1280]
        sq = self.s(3, 1); sw1 = self.s(3, 1)
        I("s_mul_i32", sq[0], sC, 80)
        I("s_add_u32", sq[1], sq[0], 256 * 3840); I("s_add_u32", sq[2], sq[0], 512 * 3840)
        I("s_add_u32", sw1[1], sq[0], 256 * 1280); I("s_add_u32", sw1[2], sq[0], 512 * 1280)
        I("s_mov_b32", sw1[0], sq[0])
        SQ = [sq[i] for i in range(3)]; SW = [sw1[i] for i in range(3)]
        order = []
        nr = lambda s: -(-(160 * (s + 1)) // 256)
        done_round = 0
        for s in range(20):
            while done_round < min(nr(s), 13):
                order.append(("d", done_round)); done_round += 1
            if s >= 2: order.append(("x", s))
        NPRO = 30
        pro, rest, cnt = [], [], 0
        for kind, i in order:
            if kind == "d": th = self.dma80(self.SQKV, self.p3840, SQ, 0, "Wq", i) + self.dma80(self.SW1, p1280, SW, STR, "Ww", i)
            else: th = [lambda i=i: xload(i, 0), lambda i=i: xload(i, 1)]
            if cnt < NPRO: pro += th; cnt += 2
            else: rest += th
        for th in pro: th()
        self.epoch_load()
        self.consts()
        ones = self.v(4, 2)
        for i in range(4): I("v_mov_b32", ones[i], 0x3F803F80)
        self.ones = ones
        bases = self.trbases80(); self.bases80 = bases
        F = [[self.v(4, 2) for T in range(5)] for _ in range(2)]; self.F80 = F
        acc = [[self.v(4, 2) for tt in range(2)] for T in range(5)]
        accM = [self.v(4, 2) for tt in range(2)]; accG = [self.v(4, 2) for tt in range(2)]
        cs = [self.v(4, 2) for T in range(5)]
        for T in range(5):
            for i in range(4): I("v_mov_b32", cs[T][i], 0)
        tz, tz2 = self.v(), self.v()
        I("v_mov_b32", tz2, 0)
        I("v_lshlrev_b32", tz, 2, V(0))
        I("v_add_u32", tz, L_CS1, tz)
        I("ds_write_b32", tz, tz2)
        I("ds_write_b32", tz, tz2, mods="offset:64")
        self.vfree(tz, tz2)
        a.wait_all(vm=False)
        def extras(s):
            L = []
            for tt in range(2):
                L.append(lambda tt=tt: I("v_mfma_f32_16x16x32_bf16", accM[tt], ones, X[s][tt], accM[tt] if s else 0))
                L.append(lambda tt=tt: I("v_mfma_f32_16x16x32_bf16", accG[tt], X[s][tt], X[s][tt], accG[tt] if s else 0))
            return L
        self.stamp("A1 loop")
        self.gemm80(X, acc, bases, F, ones, cs, extras, rest, "Ww", hooks={8: (None, self.epoch_publish)})
        self.stamp("A1 done")
        self.vfree(vX, p1280)
        self.colsum_exchange(cs, 5, L_CS1)
        I("s_add_u32", sq[0], sq[0], 1280); I("s_add_u32", sq[1], sq[1], 1280); I("s_add_u32", sq[2], sq[2], 1280)
        I("s_add_u32", sw1[0], sq[0], 1280); I("s_add_u32", sw1[1], sq[1], 1280); I("s_add_u32", sw1[2], sq[2], 1280)
        for i in range(13):
            a.side += self.dma80(self.SQKV, self.p3840, SQ, 0, "Wk", i) + self.dma80(self.SQKV, self.p3840, SW, STR, "Wv", i)
        a.side_every = 3; a.side_cnt = 0
        self.epoch_fetch_issue()
        nm = [self.v(2, 2) for tt in range(2)]
        rr = [self.v(2, 2) for tt in range(2)]
        msk = [self.s(2, 2) for _ in range(3)]
        t, tb = self.v(), self.v()
        I("v_and_b32", t, 3, self.vN)
        for i in range(3): I("v_cmp_eq_u32", msk[i], i + 1, t)
        I("v_lshrrev_b32", tb, 2, self.vN)
        I("v_lshl_add_u32", tb, tb, 4, self.vN)
        I("v_lshlrev_b32", tb, 2, tb)
        q = [self.v() for tt in range(2)]
        for tt in range(2):
            I("v_mov_b32", q[tt], accG[tt][0])
            for i in range(3): I("v_cndmask_b32", q[tt], q[tt], accG[tt][i + 1], msk[i])
            I("ds_bpermute_b32", q[tt], tb, q[tt])
            I("v_mul_f32", nm[tt][0], -1.0 / 640.0, accM[tt][0])
        vst = self.v(); st = self.s()
        I("s_lshl_b32", st, sW, 8)
        I("s_add_u32", st, st, L_STATS)
        I("v_lshl_add_u32", vst, self.vN, 3, st)
        for tt in range(2):
            var = q[tt]; u = t
            I("v_mul_f32", var, 1.0 / 640.0, q[tt])
            I("v_fma_f32", var, Neg(nm[tt][0]), nm[tt][0], var)
            I("v_max_f32", var, 0, var)
            I("v_add_f32", u, EPS, var)
            I("v_rsq_f32", rr[tt][0], u)
            I("v_mul_f32", var, var, rr[tt][0])
            I("v_fmaak_f32", var, var, rr[tt][0], EPS)
            I("v_rsq_f32", var, var)
            I("v_mul_f32", rr[tt][1], var, rr[tt][0])
            I("v_mov_b32", nm[tt][1], rr[tt][0])
            I("ds_write_b64", vst, nm[tt], mods=f"offset:{tt * 128}")
        self.vfree(t, tb, vst, *q); self.sfree(st, *msk)
        self.vfree(*accM, *accG)
        self.nm, self.rr = nm, rr
        if self.debug and self.dbgA:
            for tt in range(2): self.dump(nm[tt], f"nm_{tt}"); self.dump(rr[tt], f"rr_{tt}")
        def centre(acc, tiles):
            for T in tiles:
                for tt in range(2):
                    for h in range(2):
                        I("v_pk_fma_f32", acc[T][tt][2 * h:2 * h + 2], cs[T][2 * h:2 * h + 2], nm[tt], acc[T][tt][2 * h:2 * h + 2], mods="op_sel_hi:[1,0,1]")
        self.centre = centre
        centre(acc, [2, 3, 4])
        Pq = [self.v(6, 2) for tt in range(2)]; self.Pq = Pq
        for tt in range(2):
            for h in range(2): I("v_cvt_pk_bf16_f32", Pq[tt][4 + h], acc[2][tt][2 * h], acc[2][tt][2 * h + 1])
        s1 = [self.v(2, 2) for tt in range(2)]
        for tt in range(2): I("v_mov_b32", s1[tt][0], rr[tt][1])
        H = [self.v(4, 2) for tt in range(2)]; H2 = self.v(4, 2)
        vH = self.v(); vH2 = self.v(); sh = self.s(2, 1); t = self.v()
        I("v_and_b32", t, 1, self.vG); I("v_lshlrev_b32", t, 1, t); I("v_lshrrev_b32", vH, 1, self.vG)
        I("v_add3_u32", vH, vH, t, 1); I("v_lshlrev_b32", vH, 8, vH); I("v_lshl_add_u32", vH, self.vN, 4, vH)
        I("v_subrev_u32", t, 2, self.vG); I("v_mul_u32_u24", vH2, 20480, t); I("v_lshl_add_u32", vH2, self.vN, 4, vH2)
        I("v_mov_b32", t, OOB); I("v_cmp_gt_u32", VCC, 2, self.vG); I("v_cndmask_b32", vH2, vH2, t, VCC)
        st = self.s()
        I("s_lshl_b32", st, sR, 2); I("s_add_u32", st, st, sW); I("s_lshl_b32", st, st, 1); I("s_add_u32", st, st, 1)
        I("s_mul_i32", st, st, 20480)
        I("s_mul_i32", sh[0], sC, 1280); I("s_add_u32", sh[0], sh[0], st); I("s_add_u32", sh[0], sh[0], WS_H)
        I("s_add_u32", sh[1], sh[0], 20480)
        self.sfree(st)
        for tt in range(2):
            self.gelu_pack([acc[3][tt][0:2], acc[3][tt][2:4], acc[4][tt][0:2], acc[4][tt][2:4]], [H[tt][i] for i in range(4)], scale=[s1[tt]] * 4)
            I("v_permlane16_swap_b32", H[tt][0], H[tt][2]); I("v_permlane16_swap_b32", H[tt][1], H[tt][3])
            I("buffer_store_dwordx4", H[tt], vH, self.SWS, sh[tt], mods="offen sc1", tag="hst")
        self.gelu_pack([acc[2][0][0:2], acc[2][0][2:4], acc[2][1][0:2], acc[2][1][2:4]], [H2[i] for i in range(4)], scale=[s1[0], s1[0], s1[1], s1[1]])
        I("v_permlane16_swap_b32", H2[0], H2[2]); I("v_permlane16_swap_b32", H2[1], H2[3])
        I("buffer_store_dwordx4", H2, vH2, self.SWS, sh[0], mods="offen sc1", tag="hst")
        Z = H[0]
        I("s_nop", 1)
        for i in range(4): I("v_mov_b32", Z[i], 0)
        I("v_lshlrev_b32", vH, 4, V(0)); I("v_mov_b32", t, OOB); I("v_cmp_gt_u32", VCC, 80, V(0)); I("v_cndmask_b32", vH, t, vH, VCC)
        st = self.s(); st2 = self.s()
        I("s_mul_i32", st, sC, 1280); I("s_add_u32", st, st, WS_H)
        I("s_add_u32", st2, st, 129 * 20480)
        I("s_cmp_eq_u32", sR, 15); I("s_cselect_b32", st2, st2, OOB)
        I("s_cmp_eq_u32", sR, 0); I("s_cselect_b32", st, st, st2)
        I("buffer_store_dwordx4", Z, vH, self.SWS, st, mods="offen sc1", tag="hst")
        self.sfree(st, st2, sh[0], sh[1])
        I("s_nop", 1)
        self.vfree(*H, H2, vH, vH2, t, *s1)
        self.stamp("h stored")
        centre(acc, [0, 1])
        for tt in range(2):
            for T in range(2):
                for h in range(2): I("v_cvt_pk_bf16_f32", Pq[tt][2 * T + h], acc[T][tt][2 * h], acc[T][tt][2 * h + 1])
        if self.debug and self.dbgA:
            for tt in range(2): self.dump(Pq[tt], f"Pq_{tt}")
        a.flush_side(); a.side_every = 0
        self.acc, self.cs, self.SQ, self.SWk = acc, cs, SQ, SW

    def phi_frags(self):
        I = self.I
        PA = [self.v(4, 2) for hh in range(2)]; PB = [self.v(4, 2) for hh in range(2)]
        doff = [[self.v() for half in range(2)] for hh in range(2)]
        fa = self.v(); fb = [self.v() for hh in range(2)]; t = self.v(); big = self.v()
        I("v_mov_b32", big, 0x10000)
        I("v_mul_u32_u24", doff[0][0], 160, self.vG)
        I("v_mov_b32", t, 640); I("v_cmp_eq_u32", VCC, 0, self.vG); I("v_cndmask_b32", doff[0][1], big, t, VCC)
        I("v_subrev_u32", t, 160, doff[0][0]); I("v_cndmask_b32", doff[1][0], t, big, VCC)
        I("v_add_u32", t, 480, doff[0][0]); I("v_cmp_gt_u32", VCC, 2, self.vG); I("v_cndmask_b32", doff[1][1], big, t, VCC)
        I("v_lshlrev_b32", fa, 1, self.vN)
        I("v_lshrrev_b32", t, 2, self.vN); I("v_lshl_add_u32", t, t, 1, 32)
        for hh in range(2):
            I("v_and_b32", fb[hh], 3, self.vN); I("v_cmp_eq_u32", VCC, hh, fb[hh]); I("v_cndmask_b32", fb[hh], big, t, VCC)
        addr = {}
        for hh in range(2):
            for half in range(2):
                for ot in range(2):
                    r = self.v(); addr[hh, half, ot] = r
                    I("v_add_u32", r, doff[hh][half], fa if ot == 0 else fb[hh])
        self.vfree(doff[0][0], doff[0][1], doff[1][0], doff[1][1], fa, fb[0], fb[1], t, big)
        sp = self.s(2, 1)
        I("s_mul_i32", sp[0], self.sC, 1600); I("s_add_u32", sp[1], sp[0], 800)
        th = []; tmp = {}
        for hh in range(2):
            for ot in range(2):
                for half in range(2):
                    for j in range(4):
                        r = self.v(); tmp[hh, ot, half, j] = r
                        th.append(lambda r=r, half=half, j=j, hh=hh, ot=ot:
                                  I("buffer_load_ushort", r, addr[hh, half, ot], self.SPHI, sp[hh], mods=f"offen offset:{40 * j}"))
        def cleanup():
            for hh in range(2):
                for ot in range(2):
                    dst = PA[hh] if ot == 0 else PB[hh]
                    for half in range(2):
                        for jj in range(2):
                            I("v_lshl_or_b32", dst[2 * half + jj], tmp[hh, ot, half, 2 * jj + 1], 16, tmp[hh, ot, half, 2 * jj])
            self.vfree(*addr.values()); self.vfree(*tmp.values()); self.sfree(sp[0], sp[1])
        return PA, PB, th, cleanup

    def featmap(self, P, out1, out2):
        I = self.I; PA, PB = self.PA, self.PB
        Da = [[self.v(4, 2) for tt in range(2)] for hh in range(2)]
        Db = [self.v(4, 2) for tt in range(2)]
        for tt in range(2):
            for hh in range(2): I("v_mfma_f32_16x16x32_bf16", Da[hh][tt], PA[hh], P[tt][2 * hh:2 * hh + 4], 0)
            I("v_mfma_f32_16x16x32_bf16", Db[tt], PB[0], P[tt][0:4], 0)
        for tt in range(2): I("v_mfma_f32_16x16x32_bf16", Db[tt], PB[1], P[tt][2:6], Db[tt])
        idx = [(hh, tt) for tt in range(2) for hh in range(2)]
        SCP = [self.v(2, 2) for tt in range(2)]
        for tt in range(2):
            I("v_mul_f32", SCP[tt][0], LOG2E, self.rr[tt][0]); I("v_mul_f32", SCP[tt][1], -LOG2E, self.rr[tt][0])
        mx = [self.v() for _ in idx]; mn = [self.v() for _ in idx]
        for k, (hh, tt) in enumerate(idx):
            d = Da[hh][tt]
            I("v_max3_f32", mx[k], d[0], d[1], d[2]); I("v_min3_f32", mn[k], d[0], d[1], d[2])
        for k, (hh, tt) in enumerate(idx):
            d = Da[hh][tt]
            I("v_max3_f32", mx[k], mx[k], d[3], Db[tt][hh]); I("v_min3_f32", mn[k], mn[k], d[3], Db[tt][hh])
        T1, rx = self.allred4(mx, "v_max_f32"); T2, rn = self.allred4(mn, "v_min_f32")
        self.merge(T1, T2)
        NM = [self.v(2, 2) for _ in idx]
        for k, (hh, tt) in enumerate(idx):
            I("v_mul_f32", NM[k][0], rx[k], SCP[tt][1]); I("v_mul_f32", NM[k][1], rn[k], SCP[tt][0])
        self.vfree(*mx, *mn)
        EM = [self.v(4, 2) for _ in idx]; EB = [self.v(2, 2) for _ in idx]
        for k, (hh, tt) in enumerate(idx):
            d = Da[hh][tt]
            for h in range(2): I("v_pk_fma_f32", EM[k][2 * h:2 * h + 2], d[2 * h:2 * h + 2], SCP[tt], NM[k], mods="op_sel:[0,1,1] op_sel_hi:[1,1,1]")
            for h in range(2): I("v_pk_fma_f32", d[2 * h:2 * h + 2], d[2 * h:2 * h + 2], SCP[tt], NM[k], mods="op_sel_hi:[1,0,0]")
            I("v_pk_fma_f32", EB[k], Db[tt][0:2], SCP[tt], NM[k], mods=f"op_sel:[{hh},0,0] op_sel_hi:[{hh},1,1]")
        for k, (hh, tt) in enumerate(idx):
            d = Da[hh][tt]
            for i in range(4): I("v_exp_f32", d[i], d[i])
            for i in range(4): I("v_exp_f32", EM[k][i], EM[k][i])
            for i in range(2): I("v_exp_f32", EB[k][i], EB[k][i])
        SUM = NM
        tp = [self.v(2, 2) for _ in range(2)]
        sp_ = [self.v() for _ in idx]; sm_ = [self.v() for _ in idx]
        for k, (hh, tt) in enumerate(idx):
            d = Da[hh][tt]
            I("v_pk_add_f32", tp[0], d[0:2], d[2:4]); I("v_pk_add_f32", tp[1], EM[k][0:2], EM[k][2:4])
            I("v_add_f32", sp_[k], tp[0][0], tp[0][1]); I("v_add_f32", sm_[k], tp[1][0], tp[1][1])
            I("v_add_f32", sp_[k], sp_[k], EB[k][0]); I("v_add_f32", sm_[k], sm_[k], EB[k][1])
        self.vfree(*tp)
        T1, rp = self.allred4(sp_, "v_add_f32"); T2, rm = self.allred4(sm_, "v_add_f32")
        self.merge(T1, T2)
        for k in range(4): I("v_rcp_f32", SUM[k][0], rp[k]); I("v_rcp_f32", SUM[k][1], rm[k])
        self.vfree(*sp_, *sm_)
        for k, (hh, tt) in enumerate(idx):
            d = Da[hh][tt]
            for h in range(2): I("v_pk_mul_f32", d[2 * h:2 * h + 2], d[2 * h:2 * h + 2], SUM[k], mods="op_sel_hi:[1,0]")
            for h in range(2): I("v_pk_mul_f32", EM[k][2 * h:2 * h + 2], EM[k][2 * h:2 * h + 2], SUM[k], mods="op_sel:[0,1] op_sel_hi:[1,1]")
            I("v_pk_mul_f32", EB[k], EB[k], SUM[k])
        for k, (hh, tt) in enumerate(idx):
            d = Da[hh][tt]; o = out1[hh][tt]
            I("v_cvt_pk_bf16_f32", o[0], d[0], d[1]); I("v_cvt_pk_bf16_f32", o[1], d[2], d[3])
            I("v_cvt_pk_bf16_f32", o[2], EM[k][0], EM[k][1]); I("v_cvt_pk_bf16_f32", o[3], EM[k][2], EM[k][3])
            I("v_cvt_pk_bf16_f32", out2[hh][tt], EB[k][0], EB[k][1])
        self.vfree(*EM, *EB, *NM, *SCP, Da[0][0], Da[0][1], Da[1][0], Da[1][1], *Db)

    def stage_A2(self):
        I = self.I; a = self.a
        sR, sC, sW = self.sR, self.sC, self.sW
        acc, cs = self.acc, self.cs
        a.wait_all(vm=False)
        for T in range(5):
            for i in range(4): I("v_mov_b32", cs[T][i], 0)
        PA, PB, phi_loads, phi_cleanup = self.phi_frags(); self.PA, self.PB = PA, PB
        def pre_h(): a.wait_vm_tag("hst")
        def post_h(): self.epoch_fetch_finish(); self.set_flag(ST_H1, sR, sC)
        self.stamp("A2 loop")
        self.gemm80(self.X, acc, self.bases80, self.F80, self.ones, cs, lambda s: [], phi_loads, "Wv", hooks={8: (pre_h, post_h)}, vm_per_step=3)
        phi_cleanup()
        self.stamp("A2 done")
        self.aa.release(self.XA)
        self.vfree(self.p3840, *self.bases80)
        self.sfree(*self.SQ, *self.SWk)
        for b in range(2): self.vfree(*self.F80[b])
        self.colsum_exchange(cs, 5, L_CS2)
        p160 = self.patterns(10, 5, [1280], "consec", (sW, 4))[1280]; self.p160 = p160
        self.sCG = self.s(); I("s_lshr_b32", self.sCG, sC, 1)
        sw2 = self.s(5, 1); self.sw2 = sw2
        I("s_mul_i32", sw2[0], self.sCG, 160)
        for j in range(1, 5): I("s_add_u32", sw2[j], sw2[0], j * 128 * 1280)
        for i in range(25): a.side += self.dma_pair(self.SW2, p160[i % 5], sw2[i // 5], self.sW1024, i * 4096, ("W2", i))
        a.side_every = 3; a.side_cnt = 0
        self.centre(acc, range(5))
        Pk = [self.v(6, 2) for tt in range(2)]
        for tt in range(2):
            for T in range(3):
                for h in range(2): I("v_cvt_pk_bf16_f32", Pk[tt][2 * T + h], acc[T][tt][2 * h], acc[T][tt][2 * h + 1])
        Vp = [[self.v(2, 2) for T in range(3)] for tt in range(2)]
        for tt in range(2):
            rp = self.v(2, 2); I("v_mov_b32", rp[0], self.rr[tt][0])
            for T in range(3):
                for h in range(2):
                    x = acc[2 + T][tt][2 * h:2 * h + 2]
                    I("v_pk_mul_f32", x, x, rp, mods="op_sel_hi:[1,0]")
                    I("v_cvt_pk_bf16_f32", Vp[tt][T][h], x[0], x[1])
            self.vfree(rp)
        for T in range(5): self.vfree(*acc[T])
        self.vfree(*cs)
        K1 = [[self.v(4, 2) for tt in range(2)] for hh in range(2)]; K2 = [[self.v() for tt in range(2)] for hh in range(2)]
        self.featmap(Pk, K1, K2)
        self.vfree(*Pk)
        if self.debug and self.dbgA:
            for hh in range(2):
                for tt in range(2): self.dump(K1[hh][tt], f"K1_{hh}_{tt}"); self.dump(K2[hh][tt], f"K2_{hh}_{tt}")
            for tt in range(2):
                for T in range(3): self.dump(Vp[tt][T], f"Vp_{tt}_{T}")
        vRow, vS8, vS4 = self.v(), self.v(), self.v(); st = self.s()
        I("s_lshl_b32", st, sW, 5); I("v_add_u32", vRow, st, self.vN); I("v_mul_u32_u24", vRow, STGP, vRow)
        I("v_add_u32", vRow, L_STG, vRow)
        I("v_lshl_add_u32", vS8, self.vG, 3, vRow); I("v_lshl_add_u32", vS4, self.vG, 2, vRow)
        self.sfree(st)
        one = self.v(2, 2); I("v_mov_b32", one[0], 0x3F80); I("v_mov_b32", one[1], 0)
        for tt in range(2):
            o = tt * 16 * STGP
            I("ds_write_b64", vS8, Vp[tt][0], mods=f"offset:{o + 144}")
            I("ds_write_b64", vS8, Vp[tt][1], mods=f"offset:{o + 176}")
            I("ds_write_b64", vS8, Vp[tt][2], mods=f"offset:{o + 208}")
            I("ds_write_b64", vRow, one, mods=f"offset:{o + 240}")
            for hh in range(2):
                I("ds_write_b64", vS8, K1[hh][tt][0:2], mods=f"offset:{o + 64 * hh}")
                I("ds_write_b64", vS8, K1[hh][tt][2:4], mods=f"offset:{o + 64 * hh + 32}")
                I("ds_write_b32", vS4, K2[hh][tt], mods=f"offset:{o + 128 + 16 * hh}")
        self.vfree(vRow, vS8, vS4, one, K1[0][0], K1[0][1], K1[1][0], K1[1][1], K2[0][0], K2[0][1], K2[1][0], K2[1][1])
        for tt in range(2): self.vfree(*Vp[tt])
        vKA, vKA1, vKB = self.v(), self.v(), self.v(); t, cq = self.v(), self.v()
        shh, sdt = self.s(), self.s()
        I("s_lshr_b32", shh, sW, 1); I("s_and_b32", sdt, sW, 1)
        I("v_bfe_u32", t, self.vL, 2, 2); I("v_lshlrev_b32", t, 1, t); I("v_lshl_add_u32", t, self.vG, 3, t)
        I("v_mul_u32_u24", t, STGP, t); I("v_add_u32", t, L_STG, t)
        I("v_and_b32", cq, 3, self.vL)
        I("v_lshl_add_u32", vKA, cq, 3, t)
        st = self.s(); I("s_lshl_b32", st, shh, 6); I("v_add_u32", vKA1, st, vKA)
        I("s_mul_i32", st, shh, 40); I("s_add_u32", st, st, 160)
        I("v_add_u32", vKB, st, vKA)
        t2 = self.v(); I("s_add_u32", st, st, 32); I("v_add_u32", t2, st, t); I("v_add_u32", t, 240, t)
        I("v_cmp_eq_u32", VCC, 0, cq); I("v_cndmask_b32", t, t, t2, VCC)
        I("s_cmp_eq_u32", sdt, 0); I("s_cselect_b64", VCC, -1, 0); I("s_nop", 1); I("v_cndmask_b32", vKB, t, vKB, VCC)
        self.vfree(t, t2, cq); self.sfree(st, shh, sdt)
        a.wait_all(vm=False)
        I("s_barrier")
        D = [self.v(4, 2) for _ in range(3)]
        Fa = [[self.v(4, 2) for _ in range(4)] for _ in range(2)]
        def rd(s):
            f = Fa[s & 1]
            for half in range(2):
                o = s * 32 * STGP + half * STGP
                I("ds_read_b64_tr_b16", f[3][2 * half:2 * half + 2], vKB, mods=f"offset:{o}")
                I("ds_read_b64_tr_b16", f[0][2 * half:2 * half + 2], vKA1, mods=f"offset:{o}")
                I("ds_read_b64_tr_b16", f[1][2 * half:2 * half + 2], vKA1, mods=f"offset:{o + 32}")
                I("ds_read_b64_tr_b16", f[2][2 * half:2 * half + 2], vKA, mods=f"offset:{o + 128}")
        rd(0)
        for s in range(4):
            if s < 3: rd(s + 1)
            f = Fa[s & 1]
            for j in range(3): I("v_mfma_f32_16x16x32_bf16", D[j], f[j], f[3], D[j] if s else 0)
        self.vfree(vKA, vKA1, vKB, *Fa[0], *Fa[1])
        P1 = self.v(4, 2); P2 = self.v(2, 2)
        for j in range(2):
            for h in range(2): I("v_cvt_pk_bf16_f32", P1[2 * j + h], D[j][2 * h], D[j][2 * h + 1])
        for h in range(2): I("v_cvt_pk_bf16_f32", P2[h], D[2][2 * h], D[2][2 * h + 1])
        v1, v2 = self.v(), self.v(); st, st2 = self.s(), self.s()
        I("v_lshlrev_b32", v1, 4, self.vL); I("v_lshlrev_b32", v2, 3, self.vL)
        I("s_lshl_b32", st, sC, 4); I("s_add_u32", st, st, sR); I("s_mul_i32", st, st, 6144)
        I("s_mul_i32", st2, sW, 1536); I("s_add_u32", st, st, st2); I("s_add_u32", st, st, WS_KVP)
        I("buffer_store_dwordx4", P1, v1, self.SWS, st, mods="offen sc1", tag="kvst")
        I("buffer_store_dwordx2", P2, v2, self.SWS, st, mods="offen offset:1024 sc1", tag="kvst")
        I("s_nop", 1)
        self.vfree(v1, v2, P1, P2, *D); self.sfree(st, st2)
        a.flush_side(); a.side_every = 0
        self.stamp("kv stored")
    def gemm_gen(self, s0, s1, nT, acc, B, rd, F, first_zero, pre_step=None, vm_step=None, cs=None, prime=True):
        I = self.I; a = self.a
        if prime:
            for T in range(nT):
                for h in range(2): rd(F[s0 & 1][T], T, h, s0)
        for s in range(s0, s1):
            cur = F[s & 1]; nxt = F[(s + 1) & 1]
            if pre_step: pre_step(s)
            side = []
            if rd(None, 0, 0, s + 1):
                for T in range(nT):
                    for h in range(2): side.append(lambda T=T, h=h: rd(nxt[T], T, h, s + 1))
            vm = list(vm_step(s)) if vm_step else []
            j = 0
            for T in range(nT):
                if T % 2 == 0: a.wait_lgkm_tag(("wf", s, min(T + 1, nT - 1), 1))
                for i in range(2):
                    I("v_mfma_f32_16x16x32_bf16", acc[T][i], cur[T], B(s, i), 0 if (first_zero and s == s0) else acc[T][i])
                    if side: side.pop(0)()
                    if vm and (j % 2 == 1 or not side): vm.pop(0)()
                    j += 1
            while side: side.pop(0)()
            while vm: vm.pop(0)()
            if cs is not None:
                lab = self.lab("L_cs")
                I("s_cmp_lg_u32", self.sW, s & 3); I("s_cbranch_scc1", lab)
                a.begin_opt()
                for T in range(nT): I("v_mfma_f32_16x16x32_bf16", cs[T], self.ones, cur[T], cs[T])
                a.end_opt(); a.label(lab)

    def trbase_consec(self, pitch):
        I = self.I
        b, t = self.v(), self.v()
        I("v_lshrrev_b32", b, 1, self.vG); I("v_lshlrev_b32", b, 4, b)
        I("v_and_b32", t, 1, self.vG); I("v_lshl_add_u32", b, t, 2, b)
        I("v_bfe_u32", t, self.vL, 2, 2); I("v_add_u32", b, b, t)
        I("v_mul_u32_u24", b, pitch, b)
        I("v_and_b32", t, 3, self.vL); I("v_lshl_add_u32", b, t, 3, b)
        self.vfree(t)
        return b

    def chunk_perm(self, dst):
        I = self.I; t = self.v()
        I("v_and_b32", t, 1, self.vG); I("v_lshlrev_b32", t, 1, t); I("v_lshrrev_b32", dst, 1, self.vG)
        I("v_add_u32", dst, dst, t); I("v_lshlrev_b32", dst, 8, dst); I("v_lshl_add_u32", dst, self.vN, 4, dst)
        self.vfree(t)

    def pair_reduce(self, acc, lbase, pre=None, post=None):
        I = self.I; a = self.a
        vw, vr = self.v(), self.v(); st = self.s()
        I("s_mul_i32", st, self.sW, 5120); I("s_add_u32", st, st, lbase)
        I("v_lshl_add_u32", vw, self.vL, 4, st)
        I("s_xor_b32", st, self.sW, 2); I("s_mul_i32", st, st, 5120); I("s_add_u32", st, st, lbase)
        I("v_lshl_add_u32", vr, self.vL, 4, st)
        self.sfree(st)
        for T in range(5): I("ds_write_b128", vw, acc[T][1], mods=f"offset:{T * 1024}")
        a.wait_all(vm=False)
        if pre: pre()
        I("s_barrier")
        if post: post()
        for T in range(5): I("ds_read_b128", acc[T][1], vr, mods=f"offset:{T * 1024}")
        for T in range(5):
            for h in range(2): I("v_pk_add_f32", acc[T][0][2 * h:2 * h + 2], acc[T][0][2 * h:2 * h + 2], acc[T][1][2 * h:2 * h + 2])
        self.vfree(vw, vr)

    def stage_B(self):
        I = self.I; a = self.a
        sR, sC, sW, sCG = self.sR, self.sC, self.sW, self.sCG
        self.vfree(*self.nm)
        self.sTH, self.sTG, self.sKH = self.s(), self.s(), self.s()
        sTH, sTG, sKH = self.sTH, self.sTG, self.sKH
        I("s_and_b32", sTH, sC, 1); I("s_and_b32", sTG, sW, 1); I("s_lshr_b32", sKH, sW, 1)
        self.sTT = self.s(); sTT = self.sTT; st = self.s()
        I("s_lshl_b32", sTT, sR, 1); I("s_add_u32", sTT, sTT, sTH); I("s_lshl_b32", sTT, sTT, 1); I("s_add_u32", sTT, sTT, sTG)
        I("s_lshl_b32", sTT, sTT, 1)
        vXr = self.v(); self.vXo = vXr
        I("s_add_u32", st, sTT, sKH); I("s_lshl_b32", st, st, 4)
        I("v_add_u32", vXr, st, self.vN); I("v_mul_u32_u24", vXr, 1280, vXr)
        I("s_mul_i32", st, sCG, 160)
        I("v_lshl_add_u32", vXr, self.vG, 3, vXr); I("v_add_u32", vXr, st, vXr)
        XR = [self.v(2, 2) for T in range(5)]
        for T in range(5): I("buffer_load_dwordx2", XR[T], vXr, self.SX, 0, mods=f"offen offset:{32 * T}")
        vH = [self.v(), self.v()]; t, t2 = self.v(), self.v(); sd = self.s()
        for sg in range(2):
            I("s_add_u32", sd, sKH, 1)
            I("s_lshl_b32", st, sTT, 4); I("s_add_u32", st, st, 16)
            if sg == 0: I("s_sub_u32", st, st, sd)
            else: I("s_add_u32", st, st, sd)
            I("v_add_u32", t, st, self.vN)
            I("v_lshrrev_b32", t2, 4, t); I("v_mul_u32_u24", t2, 20480, t2)
            I("v_and_b32", t, 15, t); I("v_lshl_add_u32", t2, t, 4, t2)
            I("v_lshl_add_u32", vH[sg], self.vG, 8, t2)
        self.vfree(t, t2); self.sfree(sd)
        sH = [[self.s() for i in range(2)] for sg in range(2)]
        for sg in range(2):
            for i in range(2):
                I("s_add_u32", st, sKH, i); I("s_and_b32", st, st, 1); I("s_mul_i32", st, st, 20480)
                I("s_mul_i32", sH[sg][i], sKH, 40 * 256); I("s_add_u32", sH[sg][i], sH[sg][i], st)
                I("s_add_u32", sH[sg][i], sH[sg][i], WS_H + 20 * 256 * sg)
        b160 = self.trbase_consec(160)
        I("s_mul_i32", st, sKH, 51200); I("v_add_u32", b160, st, b160)
        self.b160 = b160
        F = [[self.v(4, 2) for T in range(5)] for _ in range(2)]
        acc = [[self.v(4, 2) for i in range(2)] for T in range(5)]
        BA = self.aa.alloc(80, 4)
        Bf = lambda s, i: BA[(s * 2 + i) * 4:(s * 2 + i) * 4 + 4]
        def mk(va, so):
            s1, s2 = self.s(), self.s()
            I("s_add_u32", s1, sR, 1); I("s_min_u32", s1, s1, 15)
            I("s_sub_u32", s2, sR, 1); I("s_max_i32", s2, s2, 0)
            I("s_cmp_eq_u32", sTH, 0); I("s_cselect_b32", s1, s2, s1); I("s_lshl_b32", s1, s1, 6)
            I("s_lshl_b32", s2, sR, 6)
            tv = self.v()
            I("v_mov_b32", va, s2); I("v_mov_b32", tv, s1); I("v_cmp_eq_u32", VCC, 1, self.vG); I("v_cndmask_b32", va, va, tv, VCC)
            I("v_lshl_add_u32", va, self.vN, 2, va)
            I("s_mov_b32", so, WS_FLAGS + ST_H1 * 1024)
            self.vfree(tv); self.sfree(s1, s2)
        self.stamp("B poll")
        self.poll(mk)
        a.wait_vm_tag(("W2", 24))
        I("s_barrier")
        self.stamp("B go")
        for s in range(10):
            for i in range(2):
                if s % 5 == 4: I("s_add_u32", sH[s // 5][i], sH[s // 5][i], 4096)
                I("buffer_load_dwordx4", Bf(s, i), vH[s // 5], self.SWS, sH[s // 5][i], mods=f"offen offset:{(s % 5 % 4) * 1024} sc1")
        self.vfree(*vH); self.sfree(sH[0][0], sH[0][1], sH[1][0], sH[1][1])
        def rd(dst, T, h, s):
            if dst is None: return s < 10
            I("ds_read_b64_tr_b16", dst[2 * h:2 * h + 2], b160, mods=f"offset:{s * 5120 + h * 1280 + 32 * T}", tag=("wf", s, T, h))
        if self.debug and self.dbgB:
            a.wait_all()
            self.dump_lds(0, 50, "W2lds"); self.dump(BA[0:16], "Bf")
        self.gemm_gen(0, 10, 5, acc, Bf, rd, F, True)
        if self.debug and self.dbgB:
            for T in range(5):
                for i in range(2): self.dump(acc[T][i], f"accB_{T}_{i}")
        self.aa.release(BA)
        for b in range(2): self.vfree(*F[b])
        self.stamp("B mfma done")
        p224 = self.patterns(14, 7, [3456], "consec", (sW, 4))[3456]; self.p224 = p224
        self.sFT = self.s(); sFT = self.sFT
        I("s_mul_i32", sFT, sC, 7); I("s_min_u32", sFT, sFT, 101)
        sw3 = self.s(5, 1); self.sw3 = sw3
        I("s_lshl_b32", sw3[0], sFT, 5)
        for j in range(1, 5): I("s_add_u32", sw3[j], sw3[0], j * 128 * 3456)
        self.w3dma = lambda i: self.dma_pair(self.SW3, p224[i % 7], sw3[i // 7], self.sW1024, i * 4096, ("W3", i))
        def post():
            self.set_flag(ST_KV, sC, sR)
            for i in range(34): a.side += self.w3dma(i)
            a.side_every = 2; a.side_cnt = 0
        self.pair_reduce(acc, L_RED, pre=lambda: a.wait_vm_tag("kvst"), post=post)
        hs = [acc[T][0] for T in range(5)]
        for T in range(5): self.vfree(acc[T][1])
        nm = self.v(2, 2); t = self.v()
        I("s_add_u32", st, sTT, sKH); I("s_and_b32", st, st, 7); I("s_lshl_b32", st, st, 7); I("s_add_u32", st, st, L_STATS)
        I("v_lshl_add_u32", t, self.vN, 3, st)
        I("ds_read_b64", nm, t)
        RES = [self.v(4, 2) for T in range(5)]; self.RES = RES
        for T in range(5):
            I("v_lshlrev_b32", RES[T][0], 16, XR[T][0]); I("v_and_b32", RES[T][1], 0xffff0000, XR[T][0])
            I("v_lshlrev_b32", RES[T][2], 16, XR[T][1]); I("v_and_b32", RES[T][3], 0xffff0000, XR[T][1])
        self.vfree(*XR)
        tp = self.v(2, 2); sS, sQ = self.v(2, 2), self.v(2, 2)
        first = True
        for T in range(5):
            for h in range(2):
                x = RES[T][2 * h:2 * h + 2]; y = hs[T][2 * h:2 * h + 2]
                I("v_pk_add_f32", tp, x, nm, mods="op_sel_hi:[1,0]")
                I("v_pk_fma_f32", y, tp, nm, y, mods="op_sel:[0,1,0] op_sel_hi:[1,1,1]")
                I("v_pk_add_f32", x, x, y)
                if first:
                    I("v_pk_mul_f32", sQ, y, y); I("v_mov_b32", sS[0], y[0]); I("v_mov_b32", sS[1], y[1]); first = False
                else:
                    I("v_pk_fma_f32", sQ, y, y, sQ); I("v_pk_add_f32", sS, sS, y)
        I("v_add_f32", sS[0], sS[0], sS[1]); I("v_add_f32", sS[1], sQ[0], sQ[1])
        r0, r1 = self.allred2(sS[0], sS[1], "v_add_f32")
        if self.debug:
            for T in range(5): self.dump(hs[T], f"x1_{T}")
        PK = [self.v(4, 2) for _ in range(3)]
        for T in range(5):
            for h in range(2): I("v_cvt_pk_bf16_f32", PK[T >> 1][2 * (T & 1) + h], hs[T][2 * h], hs[T][2 * h + 1])
        I("v_mov_b32", PK[2][2], PK[2][0]); I("v_mov_b32", PK[2][3], PK[2][1])
        for p in range(3):
            I("v_permlane16_swap_b32", PK[p][0], PK[p][2]); I("v_permlane16_swap_b32", PK[p][1], PK[p][3])
        vP, vP4, vS = self.v(), self.v(), self.v(); self.vP = vP
        self.chunk_perm(vP)
        I("v_lshrrev_b32", t, 1, self.vG); I("v_lshlrev_b32", t, 8, t); I("v_lshl_add_u32", vP4, self.vN, 4, t)
        I("v_add_u32", vP4, 2048, vP4)
        I("v_and_b32", t, 1, self.vG); I("v_cmp_eq_u32", VCC, 1, t); I("v_mov_b32", t, OOB); I("v_cndmask_b32", vP4, vP4, t, VCC)
        I("v_lshlrev_b32", vS, 3, self.vN); I("v_cmp_eq_u32", VCC, 0, self.vG); I("v_cndmask_b32", vS, t, vS, VCC)
        so, so2 = self.s(), self.s()
        I("s_add_u32", st, sTT, sKH)
        I("s_mul_i32", so, st, 20480); I("s_mul_i32", so2, sCG, 2560); I("s_add_u32", so, so, so2); I("s_add_u32", so, so, WS_X1)
        for p in range(2): I("buffer_store_dwordx4", PK[p], vP, self.SWS, so, mods=f"offen offset:{p * 1024} sc1", tag="x1st")
        I("buffer_store_dwordx4", PK[2], vP4, self.SWS, so, mods="offen sc1", tag="x1st")
        I("s_lshl_b32", so2, st, 10); I("s_lshl_b32", st, sCG, 7); I("s_add_u32", so2, so2, st); I("s_add_u32", so2, so2, WS_ST1)
        I("buffer_store_dwordx2", sS, vS, self.SWS, so2, mods="offen sc1", tag="x1st")
        I("s_nop", 1)
        self.vfree(*PK, vP4, vS, t, tp, sS, sQ, nm, *hs); self.sfree(so, so2, st)
        self.stamp("x1 stored")

    def stage_Q(self):
        I = self.I; a = self.a
        Q = self.v(26, 2); self.Q = Q
        for k in range(4): I("v_mov_b32", Q[6 * k + 5], 0)
        I("v_mov_b32", Q[24], 0); I("v_mov_b32", Q[25], 0)
        o1 = [[Q[6 * (2 * hh + tt):6 * (2 * hh + tt) + 4] for tt in range(2)] for hh in range(2)]
        o2 = [[Q[6 * (2 * hh + tt) + 4] for tt in range(2)] for hh in range(2)]
        self.featmap(self.Pq, o1, o2)
        self.vfree(*self.Pq, *self.PA, *self.PB, *self.rr)
        if self.debug:
            self.dump(Q, "Q")
        a.flush_side(); a.side_every = 0
        a.wait_vm_tag("x1st")
        I("s_barrier")
        self.set_flag(ST_X1, self.sR, self.sC)
        for th in self.w3dma(34): th()
        self.stamp("Q done")

    def stage_O(self):
        I = self.I; a = self.a
        sR, sC, sW = self.sR, self.sC, self.sW
        Q = self.Q
        SEL = self.v(8, 2); t, t2 = self.v(), self.v()
        I("v_lshrrev_b32", t, 2, self.vN); I("v_cmp_eq_u32", VCC, t, self.vG)
        I("v_and_b32", t, 1, self.vN); I("v_lshlrev_b32", t, 4, t); I("v_mov_b32", t2, 0x3F80); I("v_lshlrev_b32", t2, t, t2)
        I("v_cndmask_b32", t2, 0, t2, VCC)
        I("v_bfe_u32", t, self.vN, 1, 1); I("v_cmp_eq_u32", VCC, 0, t)
        I("v_cndmask_b32", SEL[0], 0, t2, VCC); I("v_cndmask_b32", SEL[1], t2, 0, VCC)
        I("v_mov_b32", SEL[2], 0); I("v_mov_b32", SEL[3], 0)
        I("v_mov_b32", SEL[4], SEL[0]); I("v_mov_b32", SEL[5], SEL[1]); I("v_mov_b32", SEL[6], SEL[0]); I("v_mov_b32", SEL[7], SEL[1])
        v1, v2 = self.v(), self.v()
        I("v_lshlrev_b32", v1, 4, self.vL); I("v_lshlrev_b32", v2, 3, self.vL)
        sb = self.s(); st = self.s()
        I("s_mul_i32", sb, sC, 16 * 6144); I("s_mul_i32", st, sW, 1536); I("s_add_u32", sb, sb, st); I("s_add_u32", sb, sb, WS_KVP)
        A1 = self.aa.alloc(64, 4); A2 = self.aa.alloc(32, 4)
        self.poll_row(ST_KV, sC)
        I("s_barrier")
        self.stamp("O go")
        so = [self.s(), self.s()]
        for p in range(16):
            I("s_add_u32", so[p & 1], sb, p * 6144)
            I("buffer_load_dwordx4", A1[4 * p:4 * p + 4], v1, self.SWS, so[p & 1], mods="offen sc1")
            I("buffer_load_dwordx2", A2[2 * p:2 * p + 2], v2, self.SWS, so[p & 1], mods="offen offset:1024 sc1")
        self.sfree(so[0], so[1], sb)
        m = self.vN; gk = self.vG
        G1, G2a, G2b = self.v(), self.v(), self.v()
        I("v_lshlrev_b32", G1, 8, gk); I("v_add_u32", G1, L_KVT, G1)
        I("v_lshrrev_b32", t, 1, gk); I("v_lshlrev_b32", t, 7, t); I("v_and_b32", t2, 1, gk); I("v_lshl_add_u32", t, t2, 2, t)
        I("v_add_u32", G2a, L_KVT + 1024, t); I("v_add_u32", G2b, L_KVT + 1024 + 256, t)
        zero = self.v(); I("v_mov_b32", zero, L_ZERO)
        AD = {}
        def addr(name, hh, nreg, basereg_or_const, validcmp):
            a1, a2 = self.v(), self.v()
            g2 = G2b if hh else G2a
            I("v_lshl_add_u32", a1, nreg, 4, G1); I("v_lshl_add_u32", a2, nreg, 3, g2)
            I("v_add_u32", a1, basereg_or_const, a1); I("v_add_u32", a2, basereg_or_const, a2)
            if validcmp:
                validcmp()
                I("v_cndmask_b32", a1, zero, a1, VCC); I("v_cndmask_b32", a2, zero, a2, VCC)
            AD[name] = (a1, a2)
        addr("X", 0, m, 0, None)
        n2, bs = self.v(), self.v()
        I("v_add_u32", n2, 4, m); I("v_and_b32", n2, 15, n2)
        I("v_mov_b32", bs, 3 * 1536); I("v_mov_b32", t, 2 * 1536); I("v_cmp_gt_u32", VCC, 12, m); I("v_cndmask_b32", bs, bs, t, VCC)
        addr("Y", 1, n2, bs, None)
        addr("Z0", 0, m, 1536, lambda: I("v_cmp_gt_u32", VCC, 4, m))
        I("v_subrev_u32", n2, 4, m)
        addr("Z1", 1, n2, 2 * 1536, lambda: I("v_cmp_gt_u32", VCC, 4, n2))
        I("v_mov_b32", n2, 4); I("v_and_b32", bs, 3, m)
        addr("W0", 0, n2, 1536, lambda: I("v_cmp_eq_u32", VCC, 0, bs))
        addr("W1", 1, n2, 3 * 1536, lambda: I("v_cmp_eq_u32", VCC, 1, bs))
        self.vfree(G1, G2a, G2b, n2, bs)
        Dp, Dm, Db = self.v(4, 2), self.v(4, 2), self.v(4, 2)
        for p in range(16):
            I("v_mfma_f32_16x16x32_bf16", Dp, SEL[0:4], A1[4 * p:4 * p + 4], Dp if p else 0)
            I("v_mfma_f32_16x16x32_bf16", Dm, SEL[2:6], A1[4 * p:4 * p + 4], Dm if p else 0)
            if p & 1: I("v_mfma_f32_16x16x32_bf16", Db, SEL[4:8], A2[2 * p - 2:2 * p + 2], Db if p > 1 else 0)
        self.aa.release(A1, A2); self.vfree(SEL)
        P1 = self.v(4, 2); P2 = self.v(2, 2); Zr = self.v(4, 2)
        for i in range(4): I("v_mov_b32", Zr[i], 0)
        for h in range(2):
            I("v_cvt_pk_bf16_f32", P1[h], Dp[2 * h], Dp[2 * h + 1]); I("v_cvt_pk_bf16_f32", P1[2 + h], Dm[2 * h], Dm[2 * h + 1])
            I("v_cvt_pk_bf16_f32", P2[h], Db[2 * h], Db[2 * h + 1])
        I("s_mul_i32", st, sW, 1536); I("s_add_u32", st, st, L_KVT)
        I("v_add_u32", v1, st, v1); I("v_add_u32", v2, st, v2)
        I("ds_write_b128", v1, P1); I("ds_write_b64", v2, P2, mods="offset:1024"); I("ds_write_b128", zero, Zr)
        self.vfree(v1, v2, P1, P2, Dp, Dm, Db, zero)
        a.wait_all(vm=False)
        I("s_barrier")
        A_1 = {}; A_2 = {}
        for name in ("X", "Y", "Z0", "Z1", "W0", "W1"):
            A_1[name] = self.v(4, 2); A_2[name] = self.v(4, 2)
            I("ds_read_b128", A_1[name], AD[name][0]); I("ds_read_b32", A_2[name][0], AD[name][1])
            for i in range(1, 4): I("v_mov_b32", A_2[name][i], 0)
            self.vfree(*AD[name])
        self.vfree(Zr)
        B1 = lambda hh, tt: Q[6 * (2 * hh + tt):6 * (2 * hh + tt) + 4]
        B2 = lambda hh, tt: Q[6 * (2 * hh + tt) + 4:6 * (2 * hh + tt) + 8]
        D = {(n, tt): self.v(4, 2) for n in "XYZW" for tt in range(2)}
        mm = lambda d, A_, B_, c: I("v_mfma_f32_16x16x32_bf16", d, A_, B_, c)
        for tt in range(2):
            mm(D["W", tt], A_1["W0"], B1(0, tt), 0); mm(D["X", tt], A_1["X"], B1(0, tt), 0)
            mm(D["Y", tt], A_1["Y"], B1(1, tt), 0); mm(D["Z", tt], A_1["Z0"], B1(0, tt), 0)
        for tt in range(2):
            mm(D["W", tt], A_2["W0"], B2(0, tt), D["W", tt]); mm(D["X", tt], A_2["X"], B2(0, tt), D["X", tt])
            mm(D["Y", tt], A_2["Y"], B2(1, tt), D["Y", tt]); mm(D["Z", tt], A_2["Z0"], B2(0, tt), D["Z", tt])
        for tt in range(2):
            mm(D["W", tt], A_1["W1"], B1(1, tt), D["W", tt]); mm(D["Z", tt], A_1["Z1"], B1(1, tt), D["Z", tt])
        for tt in range(2):
            mm(D["W", tt], A_2["W1"], B2(1, tt), D["W", tt]); mm(D["Z", tt], A_2["Z1"], B2(1, tt), D["Z", tt])
        self.vfree(*A_1.values(), *A_2.values(), Q)
        PX, PY, PZ = self.v(4, 2), self.v(4, 2), self.v(4, 2)
        g1 = self.s(2, 2); I("v_cmp_eq_u32", g1, 1, self.vG)
        for tt in range(2):
            w = D["W", tt]
            I("v_add_f32", w[0], 1e-6, w[0]); I("v_add_f32", w[1], 1e-6, w[1])
            I("v_rcp_f32", w[0], w[0]); I("v_rcp_f32", w[1], w[1])
            I("v_cndmask_b32", w[2], w[0], w[1], g1)
            for h in range(2):
                I("v_pk_mul_f32", D["X", tt][2 * h:2 * h + 2], D["X", tt][2 * h:2 * h + 2], w[0:2], mods="op_sel_hi:[1,0]")
                I("v_pk_mul_f32", D["Y", tt][2 * h:2 * h + 2], D["Y", tt][2 * h:2 * h + 2], w[0:2], mods="op_sel:[0,1] op_sel_hi:[1,1]")
                I("v_pk_mul_f32", D["Z", tt][2 * h:2 * h + 2], D["Z", tt][2 * h:2 * h + 2], w[2:4], mods="op_sel_hi:[1,0]")
            for h in range(2):
                for P, n_ in ((PX, "X"), (PY, "Y"), (PZ, "Z")):
                    I("v_cvt_pk_bf16_f32", P[2 * tt + h], D[n_, tt][2 * h], D[n_, tt][2 * h + 1])
        self.sfree(g1)
        for P in (PX, PY, PZ):
            I("v_permlane16_swap_b32", P[0], P[2]); I("v_permlane16_swap_b32", P[1], P[3])
        vo, voz = self.v(), self.v()
        I("v_and_b32", t, 1, self.vG); I("v_mul_u32_u24", vo, 20480, t); I("v_lshl_add_u32", vo, self.vN, 4, vo)
        I("v_mov_b32", t2, OOB); I("v_cmp_gt_u32", VCC, 2, self.vG); I("v_cndmask_b32", voz, t2, vo, VCC)
        I("v_lshrrev_b32", t, 1, self.vG); I("v_lshl_add_u32", vo, t, 8, vo)
        so = self.s()
        I("s_lshl_b32", so, sR, 2); I("s_add_u32", so, so, sW); I("s_mul_i32", so, so, 2 * 20480)
        I("s_mul_i32", st, sC, 1280); I("s_add_u32", so, so, st); I("s_add_u32", so, so, WS_O)
        I("buffer_store_dwordx4", PX, vo, self.SWS, so, mods="offen sc1", tag="ost")
        I("buffer_store_dwordx4", PZ, voz, self.SWS, so, mods="offen offset:512 sc1", tag="ost")
        I("buffer_store_dwordx4", PY, vo, self.SWS, so, mods="offen offset:768 sc1", tag="ost")
        I("s_nop", 1)
        self.vfree(PX, PY, PZ, vo, voz, t, t2, *D.values()); self.sfree(so, st)
        self.stamp("o stored")
    def stage_C(self):
        I = self.I; a = self.a
        sR, sC, sW = self.sR, self.sC, self.sW
        XA = self.aa.alloc(160, 4)
        X = lambda s, tt: XA[(s * 2 + tt) * 4:(s * 2 + tt) * 4 + 4]
        vL16 = self.v(); I("v_lshlrev_b32", vL16, 4, self.vL); self.vL16 = vL16
        sT0 = self.s(); I("s_lshl_b32", sT0, sR, 2); I("s_add_u32", sT0, sT0, sW); I("s_lshl_b32", sT0, sT0, 1)
        sx = [[self.s() for j in range(5)] for tt in range(2)]
        st = self.s()
        for tt in range(2):
            I("s_add_u32", st, sT0, tt); I("s_mul_i32", st, st, 20480); I("s_add_u32", sx[tt][0], st, WS_X1)
            for j in range(1, 5): I("s_add_u32", sx[tt][j], sx[tt][0], 4096 * j)
        b0 = self.trbase_consec(224); b1, b2 = self.v(), self.v()
        I("v_add_u32", b1, 57344, b0); I("v_add_u32", b2, 2 * 57344, b0)
        bs = [b0, b1, b2]
        F = [[self.v(4, 2) for T in range(7)] for _ in range(2)]
        acc = [[self.v(4, 2) for tt in range(2)] for T in range(7)]
        cs = [self.v(4, 2) for T in range(7)]
        for T in range(7):
            for i in range(4): I("v_mov_b32", cs[T][i], 0)
        vS = self.v(); t = self.v()
        I("v_lshlrev_b32", vS, 8, self.vG); I("v_lshl_add_u32", vS, self.vN, 3, vS)
        sst = [self.s(), self.s()]
        for tt in range(2):
            I("s_add_u32", st, sT0, tt); I("s_lshl_b32", st, st, 10); I("s_add_u32", sst[tt], st, WS_ST1)
        self.stamp("C poll")
        self.poll_row(ST_X1, sR)
        a.wait_vm_tag(("W3", 34))
        I("s_barrier")
        self.stamp("C go")
        xl = lambda s, tt: I("buffer_load_dwordx4", X(s, tt), vL16, self.SWS, sx[tt][s // 4], mods=f"offen offset:{(s % 4) * 1024} sc1")
        SQ = [[self.v(2, 2) for e in range(2)] for tt in range(2)]
        NPRE = 8
        for s in range(NPRE):
            for tt in range(2): xl(s, tt)
        for tt in range(2):
            for e in range(2): I("buffer_load_dwordx2", SQ[tt][e], vS, self.SWS, sst[tt], mods=f"offen offset:{e * 128} sc1")
        def vm_step(s):
            L = []
            for s2 in ([NPRE + 2 * s, NPRE + 2 * s + 1] if NPRE + 2 * s < 20 else []):
                L += [lambda s2=s2: xl(s2, 0), lambda s2=s2: xl(s2, 1)]
            return L
        def rd(dst, T, h, s):
            if dst is None: return s < 20
            I("ds_read_b64_tr_b16", dst[2 * h:2 * h + 2], bs[s // 8], mods=f"offset:{(s % 8) * 7168 + h * 1792 + 32 * T}", tag=("wf", s, T, h))
        def pre(s):
            if s == 9:
                a.wait_vm_tag("ost"); I("s_barrier"); self.set_flag(ST_O, sR, sC)
        self.gemm_gen(0, 20, 7, acc, X, rd, F, True, pre_step=pre, vm_step=vm_step, cs=cs)
        self.stamp("C mfma done")
        self.aa.release(XA)
        for b in range(2): self.vfree(*F[b])
        self.vfree(b0, b1, b2, self.p224, vS)
        for tt in range(2):
            for j in range(5): self.sfree(sx[tt][j])
        self.sfree(sst[0], sst[1], *[self.sw3[j] for j in range(5)])
        self.colsum_exchange(cs, 7, L_CS3)
        sw2 = self.sw2
        for i in range(25): a.side += self.dma_pair(self.SWO, self.p160[i % 5], sw2[i // 5], self.sW1024, i * 4096, ("Wo", i))
        sTG, sKH, sCG = self.sTG, self.sKH, self.sCG
        self.p160h = self.patterns(10, 5, [1280], "consec", (sTG, 2))[1280]
        self.mLo, self.mHi, self.sW4 = self.s(), self.s(), self.s()
        self.sW4o = [self.s(), self.s()]
        I("s_mul_i32", self.mLo, sKH, 51200); I("s_lshl_b32", st, sTG, 10); I("s_add_u32", self.mLo, self.mLo, st)
        I("s_mul_i32", self.mHi, sKH, 20480); I("s_add_u32", self.mHi, self.mHi, st); I("s_add_u32", self.mHi, self.mHi, 102400)
        I("s_mul_i32", self.sW4, sKH, 864 * 1280); I("s_mul_i32", st, sCG, 160); I("s_add_u32", self.sW4, self.sW4, st)
        for P in range(2): a.side += self.w4dma(P)
        a.side_every = 3; a.side_cnt = 0
        for tt in range(2): I("v_pk_add_f32", SQ[tt][0], SQ[tt][0], SQ[tt][1])
        T1, res = self.allred4([SQ[0][0][0], SQ[0][0][1], SQ[1][0][0], SQ[1][0][1]], "v_add_f32")
        for th in T1: th()
        nm = [self.v(2, 2) for tt in range(2)]; rs = [self.v(2, 2) for tt in range(2)]
        for tt in range(2):
            S_, Q_ = res[2 * tt], res[2 * tt + 1]
            I("v_mul_f32", nm[tt][0], -1.0 / 640.0, S_)
            I("v_mul_f32", t, 1.0 / 640.0, Q_)
            I("v_fma_f32", t, Neg(nm[tt][0]), nm[tt][0], t)
            I("v_max_f32", t, 0, t); I("v_add_f32", t, EPS, t); I("v_rsq_f32", rs[tt][0], t)
        self.vfree(SQ[0][0], SQ[0][1], SQ[1][0], SQ[1][1])
        vP = self.vP; v6 = self.v()
        I("v_and_b32", t, 1, self.vG); I("v_mul_u32_u24", v6, 55296, t); I("v_lshl_add_u32", v6, self.vN, 4, v6)
        I("v_lshrrev_b32", t, 1, self.vG); I("v_lshl_add_u32", v6, t, 8, v6)
        so = [self.s(), self.s()]
        for tt in range(2):
            I("s_add_u32", st, sT0, tt); I("s_mul_i32", st, st, 55296); I("s_lshl_b32", so[tt], self.sFT, 9)
            I("s_add_u32", so[tt], so[tt], st); I("s_add_u32", so[tt], so[tt], WS_H3)
        def centre(T):
            for tt in range(2):
                for h in range(2):
                    I("v_pk_fma_f32", acc[T][tt][2 * h:2 * h + 2], cs[T][2 * h:2 * h + 2], nm[tt], acc[T][tt][2 * h:2 * h + 2], mods="op_sel_hi:[1,0,1]")
        H = [self.v(4, 2) for _ in range(2)]
        k = 0
        for Tp in (0, 2, 4):
            centre(Tp); centre(Tp + 1)
            for tt in range(2):
                h_ = H[k & 1]; k += 1
                self.gelu_pack([acc[Tp][tt][0:2], acc[Tp][tt][2:4], acc[Tp + 1][tt][0:2], acc[Tp + 1][tt][2:4]], [h_[i] for i in range(4)], scale=[rs[tt]] * 4)
                I("v_permlane16_swap_b32", h_[0], h_[2]); I("v_permlane16_swap_b32", h_[1], h_[3])
                I("buffer_store_dwordx4", h_, vP, self.SWS, so[tt], mods=f"offen offset:{Tp * 512} sc1", tag="h3st")
        centre(6)
        h_ = H[k & 1]
        self.gelu_pack([acc[6][0][0:2], acc[6][0][2:4], acc[6][1][0:2], acc[6][1][2:4]], [h_[i] for i in range(4)], scale=[rs[0], rs[0], rs[1], rs[1]])
        I("v_permlane16_swap_b32", h_[0], h_[2]); I("v_permlane16_swap_b32", h_[1], h_[3])
        I("buffer_store_dwordx4", h_, v6, self.SWS, so[0], mods="offen offset:3072 sc1", tag="h3st")
        I("s_nop", 1)
        a.flush_side(); a.side_every = 0
        self.vfree(*H, v6, t, *nm, *rs, *cs)
        for T in range(7): self.vfree(*acc[T])
        self.sfree(so[0], so[1], st, sT0)
        self.stamp("h3 stored")

    def w4dma(self, P):
        j = (P + 5) % 7
        base, off = (self.mLo, 10240 * j) if j < 5 else (self.mHi, 10240 * (j - 5))
        so = self.sW4o[P & 1]
        L = [lambda: self.I("s_add_u32", so, self.sW4, P * 64 * 1280)]
        for p5 in range(5): L += self.dma_pair(self.SW4, self.p160h[p5], so, base, off + 2048 * p5, ("W4", P, p5))
        return L

    def stage_D(self):
        I = self.I; a = self.a
        sR, sC, sW, sTG, sKH, sCG, sTT = self.sR, self.sC, self.sW, self.sTG, self.sKH, self.sCG, self.sTT
        vL16 = self.vL16
        bLo = self.b160; bHi = self.v(); st = self.s()
        I("s_mul_i32", st, sKH, 20480 - 51200); I("s_add_u32", st, st, 102400); I("v_add_u32", bHi, st, bLo)
        OA = self.aa.alloc(80, 4); HA = self.aa.alloc(96, 4)
        F = [[self.v(4, 2) for T in range(5)] for _ in range(2)]
        acc = [[self.v(4, 2) for i in range(2)] for T in range(5)]
        sO = [[self.s() for j in range(3)] for i in range(2)]; sH = [self.s() for i in range(2)]
        t2 = self.s()
        for i in range(2):
            I("s_add_u32", st, sKH, i); I("s_and_b32", st, st, 1); I("s_add_u32", st, st, sTT)
            I("s_mul_i32", sH[i], st, 55296); I("s_mul_i32", t2, sKH, 27 * 1024); I("s_add_u32", sH[i], sH[i], t2); I("s_add_u32", sH[i], sH[i], WS_H3)
            I("s_mul_i32", sO[i][0], st, 20480); I("s_mul_i32", t2, sKH, 10 * 1024); I("s_add_u32", sO[i][0], sO[i][0], t2); I("s_add_u32", sO[i][0], sO[i][0], WS_O)
            I("s_add_u32", sO[i][1], sO[i][0], 4096); I("s_add_u32", sO[i][2], sO[i][0], 8192)
        self.sfree(t2)
        self.stamp("D poll o")
        self.poll_row(ST_O, sR)
        a.wait_vm_tag(("Wo", 24))
        I("s_barrier")
        self.stamp("D go")
        OB = lambda s, i: OA[(s * 2 + i) * 4:(s * 2 + i) * 4 + 4]
        HB = lambda t, i: HA[((t % 12) * 2 + i) * 4:((t % 12) * 2 + i) * 4 + 4]
        for s in range(10):
            for i in range(2): I("buffer_load_dwordx4", OB(s, i), vL16, self.SWS, sO[i][s // 4], mods=f"offen offset:{(s % 4) * 1024} sc1")
        for i in range(2): self.sfree(sO[i][0], sO[i][1], sO[i][2])
        hstate = {"blk": 0}
        def hload(t):
            L = []
            for i in range(2):
                if t and t % 4 == 0: L.append(lambda i=i: I("s_add_u32", sH[i], sH[i], 4096))
                L.append(lambda i=i, t=t: I("buffer_load_dwordx4", HB(t, i), vL16, self.SWS, sH[i], mods=f"offen offset:{(t % 4) * 1024} sc1"))
            return L
        def B(s, i): return OB(s, i) if s < 10 else HB(s - 10, i)
        def rd(dst, T, h, s):
            if dst is None: return s < 37
            j = (s >> 1) % 7
            base, off = (bLo, 10240 * j) if j < 5 else (bHi, 10240 * (j - 5))
            I("ds_read_b64_tr_b16", dst[2 * h:2 * h + 2], base, mods=f"offset:{off + (s & 1) * 5120 + h * 1280 + 32 * T}", tag=("wf", s, T, h))
        PD = 11
        pend = []
        def pre(s):
            if s == 10:
                self.stamp("D poll h3")
                self.poll_row(ST_H3, sR)
                I("s_barrier")
                self.stamp("D go2")
                for t in range(PD):
                    for th in hload(t): th()
            if s % 2 == 1:
                Pi = (s + 1) // 2
                if Pi <= 18:
                    if Pi >= 5: a.wait_vm_tag(("W4", Pi - 5, 4))
                    if Pi == 3: a.wait_vm_tag("h3st")
                    I("s_barrier")
                    if Pi == 3: self.set_flag(ST_H3, sR, sC)
                    if 2 <= Pi <= 13: pend.extend(self.w4dma(Pi))
        def vm_step(s):
            L = []
            t = s - 10 + PD
            if s >= 10 and t < 27: L += hload(t)
            n = 6 if s % 2 == 1 else 11
            for _ in range(n):
                if pend: L.append(pend.pop(0))
            return L
        self.gemm_gen(0, 37, 5, acc, B, rd, F, True, pre_step=pre, vm_step=vm_step)
        assert not pend
        self.stamp("D mfma done")
        self.aa.release(OA, HA)
        for b in range(2): self.vfree(*F[b])
        self.pair_reduce(acc, 0)
        RES = self.RES
        PK = [self.v(4, 2) for _ in range(3)]
        for T in range(5):
            for h in range(2):
                x = acc[T][0][2 * h:2 * h + 2]
                I("v_pk_add_f32", x, x, RES[T][2 * h:2 * h + 2])
                I("v_cvt_pk_bf16_f32", PK[T >> 1][2 * (T & 1) + h], x[0], x[1])
        I("v_mov_b32", PK[2][2], PK[2][0]); I("v_mov_b32", PK[2][3], PK[2][1])
        for p in range(3):
            I("v_permlane16_swap_b32", PK[p][0], PK[p][2]); I("v_permlane16_swap_b32", PK[p][1], PK[p][3])
        vo, vo4, t = self.v(), self.v(), self.v()
        I("v_lshlrev_b32", t, 3, self.vG); I("v_sub_u32", vo, self.vXo, t)
        I("v_lshrrev_b32", t, 1, self.vG); I("v_lshl_add_u32", vo4, t, 4, vo); I("v_add_u32", vo4, 128, vo4)
        u = self.v()
        I("v_and_b32", u, 1, self.vG); I("v_lshl_add_u32", t, u, 1, t); I("v_lshl_add_u32", vo, t, 4, vo)
        I("v_cmp_eq_u32", VCC, 1, u); I("v_mov_b32", u, OOB); I("v_cndmask_b32", vo4, vo4, u, VCC)
        for p in range(2): I("buffer_store_dwordx4", PK[p], vo, self.SOUT, 0, mods=f"offen offset:{64 * p}")
        I("buffer_store_dwordx4", PK[2], vo4, self.SOUT, 0, mods="offen")
        self.stamp("out stored")
    def build(self):
        self.setup()
        stages = [("A1", self.stage_A1), ("A2", self.stage_A2), ("B", self.stage_B), ("Q", self.stage_Q), ("O", self.stage_O), ("C", self.stage_C), ("D", self.stage_D)]
        for name, fn in stages:
            fn()
            if self.stop == name: break
        self.a.wait_all()
        self.write_stamps()
        self.a.label("L_exit")
        self.I("s_endpgm")
        return self

HEAD = """; hedgehog linear attention + token-shift MLP mixer, one persistent launch
; @launch grid=(256,1,1) block=(256,1,1) lds=163840
.amdgcn_target "amdgcn-amd-amdhsa--gfx950"
.text
.globl {n}
.p2align 8
.type {n},@function
{n}:
"""
TAIL = """
.section .rodata,"a"
.p2align 6
.amdhsa_kernel {n}
  .amdhsa_next_free_vgpr 512
  .amdhsa_next_free_sgpr 102
  .amdhsa_accum_offset 256
  .amdhsa_group_segment_fixed_size 0
  .amdhsa_kernarg_size 96
  .amdhsa_user_sgpr_count 2
  .amdhsa_user_sgpr_kernarg_segment_ptr 1
  .amdhsa_system_sgpr_workgroup_id_x 1
.end_amdhsa_kernel
"""
def generate(stop="end", debug=False, prof=False):
    k = K(stop, debug, prof).build()
    body = k.a.text()
    return HEAD.format(n=NAME) + body + TAIL.format(n=NAME), k

if __name__ == "__main__":
    import json
    debug = "--debug" in sys.argv; prof = "--prof" in sys.argv
    stop = "end"
    for x in sys.argv:
        if x.startswith("--stop="): stop = x[7:]
    out = [x for x in sys.argv[1:] if not x.startswith("--")][0]
    txt, k = generate(stop=stop, debug=debug, prof=prof)
    open(out, "w").write(txt)
    json.dump(dict(dumps=k.dumps, stamps=[n for n, d in k.stamps]), open(out + ".json", "w"))
    print("instructions:", k.a.count(), "vgpr peak", k.va.peak, "agpr peak", k.aa.peak, "sgpr peak", k.sa.peak, "max vm", k.a.max_vm)
```
